```python
import torch

def _softmax(x, axis=-1):
    return torch.softmax(x, dim=axis)
def _gelu(x):
    return torch.nn.functional.gelu(x, approximate="tanh")
def _silu(x):
    return torch.nn.functional.silu(x)
def _sigmoid(x):
    return torch.sigmoid(x)
def _layernorm(x, axis=-1, eps=1e-5):
    m = x.mean(dim=axis, keepdim=True)
    v = x.var(dim=axis, keepdim=True, unbiased=False)
    return (x - m) / torch.sqrt(v + eps)
def _scatter_add(tgt, idx, src, axis=0):
    return tgt.clone().index_add_(axis, idx, src)
def _segment_sum(src, seg, n):
    out = torch.zeros((n,) + src.shape[1:], dtype=src.dtype)
    return out.index_add_(0, seg, src)
def _pad(x, pw):
    flat = tuple(v for pair in reversed(pw) for v in pair)
    return torch.nn.functional.pad(x, flat)

kernel_name = 'interleave_layers__mha_block__glu_gated_bilinear__prompt'

def setup_inputs():

    _w = (lambda a: (lambda t: t.to(torch.bfloat16) if t.is_floating_point() else t)(torch.as_tensor(a)))
    def _A_setup():
        B, S, D, H = 1, 2048, 512, 32
        return {
            "x": _w((lambda *s: torch.randn(*s, dtype=torch.bfloat16) * 0.05)(B, S, D)),
            "wqkv": _w((lambda *s: torch.randn(*s, dtype=torch.bfloat16) * 0.05)(D, 3 * D)),
            "wo": _w((lambda *s: torch.randn(*s, dtype=torch.bfloat16) * 0.05)(D, D)),
        }
    _A_in = _A_setup()

    def _B_setup():
        B, S, D, F = 1, 2048, 512, 1376
        return {
            "x": _w((lambda *s: torch.randn(*s, dtype=torch.bfloat16) * 0.05)(B, S, D)),
            "w_gate": _w((lambda *s: torch.randn(*s, dtype=torch.bfloat16) * 0.4)(D, F) * (D ** -0.5)),
            "w_up": _w((lambda *s: torch.randn(*s, dtype=torch.bfloat16) * 0.4)(D, F) * (D ** -0.5)),
            "w_down": _w((lambda *s: torch.randn(*s, dtype=torch.bfloat16) * 0.4)(F, D) * (F ** -0.5)),
        }
    _B_in = _B_setup()

    return {
        "A_x": _A_in["x"],
        "A_wqkv": _A_in["wqkv"],
        "A_wo": _A_in["wo"],
        "B_x": _B_in["x"],
        "B_w_gate": _B_in["w_gate"],
        "B_w_up": _B_in["w_up"],
        "B_w_down": _B_in["w_down"],
    }

def reference(A_x, A_wqkv, A_wo, B_x, B_w_gate, B_w_up, B_w_down):
    def _A_ref(x, wqkv, wo):
        B, S, D = x.shape
        H = 32
        Dh = D // H
        qkv = (lambda x, *d: x.permute(*d))((x @ wqkv).reshape(B, S, 3, H, Dh), 2, 0, 3, 1, 4)
        q, k, v = qkv[0], qkv[1], qkv[2]
        scores = torch.einsum("bhqd,bhkd->bhqk", q, k) * (Dh ** -0.5)
        p = _softmax(scores, axis=-1)
        o = torch.einsum("bhqk,bhkd->bhqd", p, v)
        return (lambda x, *d: x.permute(*d))(o, 0, 2, 1, 3).reshape(B, S, D) @ wo

    def _B_ref(x, w_gate, w_up, w_down):
        g = torch.einsum("bsd,df->bsf", x, w_gate)
        u = torch.einsum("bsd,df->bsf", x, w_up)
        h = g * u
        return torch.einsum("bsf,fd->bsd", h, w_down)

    x = A_x
    x = x + _A_ref(_layernorm(x, axis=-1), A_wqkv, A_wo)
    x = x + _B_ref(_layernorm(x, axis=-1), B_w_gate, B_w_up, B_w_down)
    x = x + _A_ref(_layernorm(x, axis=-1), A_wqkv, A_wo)
    x = x + _B_ref(_layernorm(x, axis=-1), B_w_gate, B_w_up, B_w_down)
    return x
```

```python
class Asm:
    def __init__(self):
        self.lines = []
        self.vm = []
        self.lg = []
        self.uid = 0
    def I(self, s):
        self.lines.append("  " + s)
    def C(self, s):
        self.lines.append("  ; " + s)
    def L(self, name):
        self.lines.append(name + ":")
    def label(self, base):
        self.uid += 1
        return f"{base}_{self.uid}"
    def VM(self, s, tag):
        self.I(s); self.vm.append(tag)
    def wait_vm(self, tags, extra=""):
        if not isinstance(tags, (list, tuple, set)): tags = [tags]
        last = -1
        for i, t in enumerate(self.vm):
            if t in tags: last = i
        if last < 0:
            return
        n = len(self.vm) - 1 - last
        assert n <= 63, n
        self.I(f"s_waitcnt vmcnt({n}){extra}")
        self.vm = self.vm[last+1:]
    def wait_vm_all(self):
        self.I("s_waitcnt vmcnt(0)"); self.vm = []
    def LD(self, s, tag):
        self.I(s); self.lg.append(tag)
    def wait_lg(self, tags):
        if not isinstance(tags, (list, tuple, set)): tags = [tags]
        last = -1
        for i, t in enumerate(self.lg):
            if t in tags: last = i
        if last < 0:
            return
        n = len(self.lg) - 1 - last
        if n > 15: n = 15
        real = len(self.lg) - 1 - last
        assert real <= 15, real
        self.I(f"s_waitcnt lgkmcnt({n})")
        self.lg = self.lg[last+1:]
    def wait_lg_all(self):
        self.I("s_waitcnt lgkmcnt(0)"); self.lg = []
    def nop(self, n):
        while n > 0:
            k = min(n, 16)
            self.I(f"s_nop {k-1}")
            n -= k
    def text(self):
        return "\n".join(self.lines) + "\n"

def v(i, n=1):
    return f"v{i}" if n == 1 else f"v[{i}:{i+n-1}]"
def a(i, n=1):
    return f"a{i}" if n == 1 else f"a[{i}:{i+n-1}]"
def s(i, n=1):
    return f"s{i}" if n == 1 else f"s[{i}:{i+n-1}]"

def f32bits(x):
    import struct
    return struct.unpack("<I", struct.pack("<f", x))[0]
```

```python
import sys, math
from asmlib import *

NAME = "interleave_layers__mha_block__glu_gated_bilinear__prompt"
LSTR = 0x1400000
QF, KF, VF, OF, XA, XF_, HF, STA, STF = 0, 0x200000, 0x400000, 0x600000, 0x800000, 0xA00000, 0xC00000, 0x1180000, 0x11C0000
CSQ = 0x1200000
CSG = 0x1210000
WS_USED = 3 * LSTR
def LB(L): return (L + 1) * LSTR

S_W = 3
P_AX, P_WQKV, P_WO, P_BX, P_G, P_U, P_D, P_OUT, P_DBG, P_WS = 16, 18, 20, 22, 24, 26, 28, 30, 32, 34
R_WS, R_WQKV, R_WO, R_G, R_U, R_D, R_AX, R_OUT = 36, 40, 44, 48, 52, 56, 60, 64
S_LB = 68
T = 70
LOG2E = 1.4426950408889634

def srd(A, r, p, nbytes):
    A.I(f"s_mov_b32 s{r}, s{p}")
    A.I(f"s_and_b32 s{r+1}, s{p+1}, 0xffff")
    A.I(f"s_mov_b32 s{r+2}, {nbytes:#x}")
    A.I(f"s_mov_b32 s{r+3}, 0x20000")

def prologue(A, nwg, endlabel, srds):
    A.I(f"s_cmp_ge_u32 s2, {nwg}")
    A.I(f"s_cbranch_scc1 {endlabel}")
    A.I("s_load_dwordx16 s[16:31], s[0:1], 0")
    A.I("s_load_dwordx4 s[32:35], s[0:1], 64")
    A.I("v_lshrrev_b32 v3, 6, v0")
    A.I("v_and_b32 v1, 63, v0")
    A.I("v_lshlrev_b32 v2, 4, v1")
    A.I(f"v_readfirstlane_b32 s{S_W}, v3")
    A.I("s_waitcnt lgkmcnt(0)")
    tab = {R_WS: (P_WS, WS_USED), R_WQKV: (P_WQKV, 512*1536*2), R_WO: (P_WO, 512*512*2), R_G: (P_G, 512*1376*2),
           R_U: (P_U, 512*1376*2), R_D: (P_D, 1376*512*2), R_AX: (P_AX, 2048*512*2), R_OUT: (P_OUT, 2048*512*2)}
    for r in srds:
        srd(A, r, *tab[r])

def tr_base64(A, dst, tmp):
    A.I(f"v_lshrrev_b32 v{dst}, 5, v1")
    A.I(f"v_lshlrev_b32 v{dst}, 8, v{dst}")
    A.I(f"v_bfe_u32 v{tmp}, v1, 2, 2")
    A.I(f"v_lshl_add_u32 v{dst}, v{tmp}, 6, v{dst}")
    A.I(f"v_bfe_u32 v{tmp}, v1, 4, 1")
    A.I(f"v_lshl_add_u32 v{dst}, v{tmp}, 5, v{dst}")
    A.I(f"v_and_b32 v{tmp}, 3, v1")
    A.I(f"v_lshl_add_u32 v{dst}, v{tmp}, 3, v{dst}")

def half_sum(A, r, tmp):
    A.I(f"v_mov_b32 v{tmp}, v{r}")
    A.nop(2)
    A.I(f"v_permlane32_swap_b32 v{r}, v{tmp}")
    A.nop(1)
    A.I(f"v_add_f32 v{r}, v{r}, v{tmp}")

def stats_store(A, vsum, vsq, tmp, s_off, s_c):
    half_sum(A, vsum, tmp)
    half_sum(A, vsq, tmp)
    t0, t1 = T+20, T+21
    A.I(f"s_lshr_b32 s{t0}, s{s_c}, 2")
    A.I(f"s_lshl_b32 s{t0}, s{t0}, 10")
    A.I(f"s_add_u32 s{t0}, s{t0}, s{s_off}")
    A.I(f"s_bfe_u32 s{t1}, s{s_c}, 0x10001")
    A.I(f"s_lshl_b32 s{t1}, s{t1}, 9")
    A.I(f"s_add_u32 s{t0}, s{t0}, s{t1}")
    A.I(f"s_and_b32 s{t1}, s{s_c}, 1")
    A.I(f"s_lshl_b32 s{t1}, s{t1}, 3")
    A.I(f"s_add_u32 s{t0}, s{t0}, s{t1}")
    A.I("s_mov_b32 exec_hi, 0")
    A.VM(f"buffer_store_dwordx2 v[{vsum}:{vsum+1}], v2, s[{R_WS}:{R_WS+3}], s{t0} offen", "st")
    A.I(f"s_mov_b64 exec, -1")

def stats_load(A, dst, s_off):
    for q in range(4):
        A.VM(f"buffer_load_dwordx4 v[{dst+4*q}:{dst+4*q+3}], v2, s[{R_WS}:{R_WS+3}], s{s_off} offen offset:{1024*q}", "stats")

def stats_finish(A, src, vmean, vrstd, mfrag, tmp):
    A.wait_vm("stats")
    for k in (8, 4, 2):
        for i in range(k):
            A.I(f"v_add_f32 v{src+i}, v{src+i}, v{src+i+k}")
    half_sum(A, src, tmp)
    half_sum(A, src+1, tmp)
    A.I(f"v_mul_f32 v{vmean}, {1.0/512}, v{src}")
    A.I(f"v_mul_f32 v{src+1}, {1.0/512}, v{src+1}")
    A.I(f"v_fma_f32 v{src+1}, -v{vmean}, v{vmean}, v{src+1}")
    A.I(f"v_max_f32 v{src+1}, 0, v{src+1}")
    A.I(f"v_add_f32 v{src+1}, {f32bits(1e-5):#x}, v{src+1}")
    A.I(f"v_rsq_f32 v{vrstd}, v{src+1}")
    A.I(f"v_sub_f32 v{tmp}, 0, v{vmean}")
    A.I(f"v_cvt_pk_bf16_f32 v{tmp+1}, v{tmp}, v{tmp}")
    A.I(f"v_and_b32 v{tmp+1}, 0xffff0000, v{tmp+1}")
    A.I(f"v_sub_f32 v{tmp+2}, v{tmp}, v{tmp+1}")
    A.I(f"v_cvt_pk_bf16_f32 v{mfrag}, v{tmp+1}, v{tmp+2}")
    for i in (1, 2, 3):
        A.I(f"v_mov_b32 v{mfrag+i}, v{mfrag}")

def mfma(A, d, x, y, c=None):
    c = d if c is None else c
    A.I(f"v_mfma_f32_32x32x16_bf16 {d}, {x}, {y}, {c}")

def k_prep(A):
    prologue(A, 256, "prep_end", [R_WS, R_AX])
    R = 72
    sRS, sStrip, sKind = 76, 77, 78
    A.I("s_cmp_ge_u32 s2, 134")
    A.I("s_cbranch_scc1 prep_noB1")
    A.I("s_cmp_ge_u32 s2, 91"); A.I("s_cbranch_scc1 prep_up")
    A.I("s_cmp_ge_u32 s2, 48"); A.I("s_cbranch_scc1 prep_gate")
    srd(A, R, P_WQKV, 512*1536*2); A.I(f"s_mov_b32 s{sRS}, 3072"); A.I(f"s_mov_b32 s{sStrip}, s2"); A.I(f"s_mov_b32 s{sKind}, 0")
    A.I("s_branch prep_goB")
    A.L("prep_gate")
    srd(A, R, P_G, 512*1376*2); A.I(f"s_mov_b32 s{sRS}, 2752"); A.I(f"s_sub_u32 s{sStrip}, s2, 48"); A.I(f"s_mov_b32 s{sKind}, 1")
    A.I("s_branch prep_goB")
    A.L("prep_up")
    srd(A, R, P_U, 512*1376*2); A.I(f"s_mov_b32 s{sRS}, 2752"); A.I(f"s_sub_u32 s{sStrip}, s2, 91"); A.I(f"s_mov_b32 s{sKind}, 2")
    A.L("prep_goB")
    A.I("v_lshrrev_b32 v4, 2, v1")
    A.I(f"v_mul_lo_u32 v4, v4, s{sRS}")
    A.I("v_and_b32 v5, 3, v1")
    A.I("v_lshl_add_u32 v4, v5, 4, v4")
    A.I(f"s_lshl_b32 s80, s{S_W}, 7")
    A.I(f"s_mul_i32 s80, s80, s{sRS}")
    A.I(f"s_lshl_b32 s81, s{sStrip}, 6")
    A.I(f"s_add_u32 s80, s80, s81")
    A.I(f"s_lshl_b32 s82, s{sRS}, 4")
    A.I(f"s_lshl_b32 s83, s{S_W}, 13")
    for i in range(8):
        A.I(f"s_mov_b32 m0, s83")
        A.I(f"s_add_u32 s83, s83, 1024")
        A.I(f"buffer_load_dwordx4 v4, s[{R}:{R+3}], s80 offen lds")
        A.I(f"s_add_u32 s80, s80, s82")
    A.L("prep_noB1")
    A.I("s_lshr_b32 s84, s2, 2")
    A.I("s_and_b32 s85, s2, 3")
    A.I("s_lshl_b32 s85, s85, 2")
    A.I(f"s_add_u32 s85, s85, s{S_W}")
    A.I("v_and_b32 v6, 31, v1")
    A.I("v_lshlrev_b32 v6, 10, v6")
    A.I("v_lshrrev_b32 v7, 5, v1")
    A.I("v_lshl_add_u32 v6, v7, 3, v6")
    A.I("s_lshl_b32 s86, s84, 15")
    A.I("s_lshl_b32 s87, s85, 6")
    A.I("s_add_u32 s86, s86, s87")
    for i in range(4):
        A.I(f"buffer_load_dwordx2 v[{8+2*i}:{9+2*i}], v6, s[{R_AX}:{R_AX+3}], s86 offen offset:{16*i}")
    A.I("s_waitcnt vmcnt(0)")
    A.I("s_lshl_b32 s86, s84, 15")
    A.I("s_lshl_b32 s87, s85, 11")
    A.I("s_add_u32 s86, s86, s87")
    A.I(f"s_add_u32 s86, s86, {XF_:#x}")
    A.I(f"buffer_store_dwordx4 v[8:11], v2, s[{R_WS}:{R_WS+3}], s86 offen")
    A.I(f"buffer_store_dwordx4 v[12:15], v2, s[{R_WS}:{R_WS+3}], s86 offen offset:1024")
    A.I("v_mov_b32 v16, 0"); A.I("v_mov_b32 v17, 0")
    for i in range(8):
        A.I(f"v_and_b32 v18, 0xffff0000, v{8+i}")
        A.I(f"v_lshlrev_b32 v19, 16, v{8+i}")
        A.I("v_add_f32 v16, v16, v18"); A.I("v_fmac_f32 v17, v18, v18")
        A.I("v_add_f32 v16, v16, v19"); A.I("v_fmac_f32 v17, v19, v19")
    A.I("s_lshl_b32 s86, s84, 12")
    A.I(f"s_add_u32 s86, s86, {STF:#x}")
    stats_store(A, 16, 17, 18, 86, 85)
    A.I("s_cmp_ge_u32 s2, 134")
    A.I("s_cbranch_scc1 prep_end")
    tr_base64(A, 20, 21)
    A.I(f"s_lshl_b32 s83, s{S_W}, 13")
    A.I("v_add_u32 v20, s83, v20")
    for i in range(4): A.I(f"v_mov_b32 v{24+i}, 0x3f803f80")
    for i in range(16): A.I(f"v_mov_b32 v{32+i}, 0")
    for i in range(8):
        A.I(f"ds_read_b64_tr_b16 v[{48+4*i}:{49+4*i}], v20 offset:{1024*i}")
        A.I(f"ds_read_b64_tr_b16 v[{50+4*i}:{51+4*i}], v20 offset:{1024*i+512}")
    A.I("s_waitcnt lgkmcnt(0)")
    for i in range(8):
        mfma(A, v(32,16), v(24,4), v(48+4*i,4))
    A.nop(14)
    A.I("v_cvt_pk_bf16_f32 v28, v32, v32")
    A.I("v_and_b32 v30, 0xffff0000, v28")
    A.I("v_sub_f32 v30, v32, v30")
    A.I("v_cvt_pk_bf16_f32 v29, v30, v30")
    A.I(f"s_lshr_b32 s86, s{S_W}, 1"); A.I("s_lshl_b32 s86, s86, 9")
    A.I(f"s_and_b32 s87, s{S_W}, 1"); A.I("s_lshl_b32 s87, s87, 3")
    A.I("s_add_u32 s86, s86, s87")
    A.I(f"s_cmp_eq_u32 s{sKind}, 0")
    A.I("s_cbranch_scc0 prep_gu_addr")
    A.I(f"s_lshl_b32 s87, s{sStrip}, 10"); A.I("s_add_u32 s86, s86, s87"); A.I(f"s_add_u32 s86, s86, {CSQ:#x}")
    A.I("v_mov_b32 v31, v2")
    A.I("s_branch prep_store")
    A.L("prep_gu_addr")
    A.I(f"s_lshl_b32 s87, s{sStrip}, 11"); A.I("s_add_u32 s86, s86, s87"); A.I(f"s_add_u32 s86, s86, {CSG:#x}")
    A.I(f"s_sub_u32 s87, s{sKind}, 1"); A.I("s_lshl_b32 s87, s87, 8"); A.I("s_add_u32 s86, s86, s87")
    A.I("v_bfe_u32 v31, v1, 4, 1"); A.I("v_lshlrev_b32 v31, 10, v31")
    A.I("v_and_b32 v30, 15, v1"); A.I("v_lshl_add_u32 v31, v30, 4, v31")
    A.L("prep_store")
    A.I("s_mov_b32 exec_hi, 0")
    A.I(f"buffer_store_dwordx2 v[28:29], v31, s[{R_WS}:{R_WS+3}], s86 offen")
    A.L("prep_end")
    A.I("s_endpgm")

def k_qkv(A, L, tag):
    end = f"qkv{tag}_end"
    prologue(A, 256, end, [R_WS, R_WQKV])
    A.I(f"s_mov_b32 s{S_LB}, {LB(L):#x}")
    sI, sJ, sTT, sWo, sXo, sM, sT = 70, 71, 72, 73, 74, 75, 76
    A.I(f"s_and_b32 s{sI}, s2, 15"); A.I(f"s_lshr_b32 s{sJ}, s2, 4")
    A.I(f"s_lshl_b32 s{sTT}, s{sI}, 2"); A.I(f"s_add_u32 s{sTT}, s{sTT}, s{S_W}")
    vWo, vTr0, vTr1 = 4, 5, 6
    vST = 8
    vCS = 24
    vMF = 36
    vMean, vRstd, vTmp = 40, 41, 42
    vW = 48
    vQ, vK, vV = 72, 88, 104
    vRT = 120
    A.I(f"s_lshl_b32 s{sT}, s{sTT}, 12")
    A.I(f"s_add_u32 s{sT}, s{sT}, s{S_LB}")
    A.I(f"s_add_u32 s{sT}, s{sT}, {(STF - LSTR) & 0xffffffff:#x}")
    stats_load(A, vST, sT)
    A.I(f"s_lshl_b32 s{sXo}, s{sTT}, 15")
    A.I(f"s_add_u32 s{sXo}, s{sXo}, s{S_LB}")
    A.I(f"s_add_u32 s{sXo}, s{sXo}, {(XF_ - LSTR) & 0xffffffff:#x}")
    A.I(f"v_lshrrev_b32 v{vWo}, 2, v1")
    A.I(f"v_mul_u32_u24 v{vWo}, 3072, v{vWo}")
    A.I(f"v_and_b32 v7, 3, v1")
    A.I(f"v_lshl_add_u32 v{vWo}, v7, 4, v{vWo}")
    A.I(f"s_mul_i32 s{sWo}, s{S_W}, 49152")
    A.I(f"s_lshl_b32 s{sT}, s{sJ}, 6")
    A.I(f"s_add_u32 s{sWo}, s{sWo}, s{sT}")
    A.I(f"s_mul_i32 s{sM}, s{S_W}, 3072")
    for g in range(8):
        A.I(f"s_mov_b32 m0, s{sM}")
        for q in range(4):
            ks = 4*g + q
            A.VM(f"buffer_load_dwordx4 a[{4*ks}:{4*ks+3}], v2, s[{R_WS}:{R_WS+3}], s{sXo} offen offset:{1024*q}", f"g{g}")
            if q < 3:
                A.VM(f"buffer_load_dwordx4 v{vWo}, s[{R_WQKV}:{R_WQKV+3}], s{sWo} offen offset:{1024*q} lds", f"g{g}")
        if g < 7:
            A.I(f"s_add_u32 s{sXo}, s{sXo}, 4096")
            A.I(f"s_add_u32 s{sWo}, s{sWo}, 196608")
            A.I(f"s_add_u32 s{sM}, s{sM}, 12288")
    A.I(f"s_lshl_b32 s{sT}, s{sJ}, 10")
    A.I(f"s_add_u32 s{sT}, s{sT}, {CSQ:#x}")
    for sidx in range(3):
        A.VM(f"buffer_load_dwordx4 v[{vCS+4*sidx}:{vCS+4*sidx+3}], v2, s[{R_WS}:{R_WS+3}], s{sT} offen", "cs")
        if sidx < 2: A.I(f"s_add_u32 s{sT}, s{sT}, 16384")
    tr_base64(A, vTr0, 7)
    A.I(f"v_add_u32 v{vTr1}, 49152, v{vTr0}")
    for i in range(48): A.I(f"v_mov_b32 v{vQ+i}, 0")
    stats_finish(A, vST, vMean, vRstd, vMF, vTmp)
    A.I(f"s_lshl_b32 s{sT}, s{S_W}, 7"); A.I(f"s_add_u32 s{sT}, s{sT}, 98304")
    A.I(f"v_and_b32 v{vTmp}, 31, v1"); A.I(f"v_lshlrev_b32 v{vTmp}, 2, v{vTmp}"); A.I(f"v_add_u32 v{vTmp}, s{sT}, v{vTmp}")
    A.I(f"ds_write_b32 v{vTmp}, v{vRstd}")
    A.I(f"v_lshrrev_b32 v{vTmp+1}, 5, v1"); A.I(f"v_lshlrev_b32 v{vTmp+1}, 4, v{vTmp+1}"); A.I(f"v_add_u32 v{vTmp+1}, s{sT}, v{vTmp+1}")
    A.I("s_waitcnt lgkmcnt(0)")
    for q in range(4):
        A.I(f"ds_read_b128 v[{vRT+4*q}:{vRT+4*q+3}], v{vTmp+1} offset:{32*q}")
    A.I("s_waitcnt lgkmcnt(0)")
    def reads(ks):
        b = vTr0 if ks < 16 else vTr1
        o = (ks % 16) * 3072
        p = vW + 12*(ks & 1)
        for sidx in range(3):
            A.LD(f"ds_read_b64_tr_b16 v[{p+4*sidx}:{p+4*sidx+1}], v{b} offset:{o+1024*sidx}", f"k{ks}")
            A.LD(f"ds_read_b64_tr_b16 v[{p+4*sidx+2}:{p+4*sidx+3}], v{b} offset:{o+1024*sidx+512}", f"k{ks}")
    A.wait_vm("g0"); A.I("s_barrier")
    reads(0)
    for ks in range(32):
        if ks + 1 < 32:
            if (ks + 1) % 4 == 0:
                A.wait_vm(f"g{(ks+1)//4}"); A.I("s_barrier")
            reads(ks + 1)
        A.wait_lg(f"k{ks}")
        p = vW + 12*(ks & 1)
        x = a(4*ks, 4)
        mfma(A, v(vQ,16), v(p,4), x)
        mfma(A, v(vK,16), v(p+4,4), x)
        mfma(A, v(vV,16), x, v(p+8,4))
    A.wait_vm("cs")
    mfma(A, v(vQ,16), v(vCS,4), v(vMF,4))
    mfma(A, v(vK,16), v(vCS+4,4), v(vMF,4))
    mfma(A, v(vV,16), v(vMF,4), v(vCS+8,4))
    A.I(f"v_mul_f32 v{vTmp}, {f32bits(0.25*LOG2E):#x}, v{vRstd}")
    sO = 77
    A.I(f"s_lshl_b32 s{sO}, s{sJ}, 17")
    A.I(f"s_lshl_b32 s{sT}, s{sTT}, 10")
    A.I(f"s_add_u32 s{sO}, s{sO}, s{sT}")
    A.I(f"s_add_u32 s{sO}, s{sO}, s{S_LB}")
    A.I(f"s_add_u32 s{sO+1}, s{sO}, 65536")
    A.I(f"s_add_u32 s{sO+2}, s{sO}, {KF:#x}")
    A.I(f"s_add_u32 s{sO+3}, s{sO+1}, {KF:#x}")
    A.I(f"s_add_u32 s{sO+4}, s{sO}, {VF:#x}")
    vKa, vVa = vTmp+1, vTmp+2
    A.I(f"v_and_b32 v{vKa}, 0x33, v1")
    A.I(f"v_bfe_u32 v{vTmp+3}, v1, 2, 1"); A.I(f"v_lshl_or_b32 v{vKa}, v{vTmp+3}, 3, v{vKa}")
    A.I(f"v_bfe_u32 v{vTmp+3}, v1, 3, 1"); A.I(f"v_lshl_or_b32 v{vKa}, v{vTmp+3}, 2, v{vKa}")
    A.I(f"v_lshlrev_b32 v{vKa}, 4, v{vKa}")
    A.I(f"v_and_b32 v{vVa}, 15, v1"); A.I(f"v_lshlrev_b32 v{vVa}, 4, v{vVa}")
    A.I(f"v_bfe_u32 v{vTmp+3}, v1, 4, 1"); A.I(f"v_lshl_or_b32 v{vVa}, v{vTmp+3}, 16, v{vVa}")
    A.I(f"v_bfe_u32 v{vTmp+3}, v1, 5, 1"); A.I(f"v_lshl_or_b32 v{vVa}, v{vTmp+3}, 8, v{vVa}")
    def fin(acc, scale, out):
        for i in range(16):
            A.I(f"v_mul_f32 v{acc+i}, v{acc+i}, v{scale(i)}")
        for i in range(8):
            A.I(f"v_cvt_pk_bf16_f32 v{out+i}, v{acc+2*i}, v{acc+2*i+1}")
    fin(vQ, lambda i: vTmp, vW)
    A.I(f"buffer_store_dwordx4 v[{vW}:{vW+3}], v2, s[{R_WS}:{R_WS+3}], s{sO} offen")
    A.I(f"buffer_store_dwordx4 v[{vW+4}:{vW+7}], v2, s[{R_WS}:{R_WS+3}], s{sO+1} offen")
    fin(vK, lambda i: vRstd, vW+8)
    A.I(f"buffer_store_dwordx4 v[{vW+8}:{vW+11}], v{vKa}, s[{R_WS}:{R_WS+3}], s{sO+2} offen")
    A.I(f"buffer_store_dwordx4 v[{vW+12}:{vW+15}], v{vKa}, s[{R_WS}:{R_WS+3}], s{sO+3} offen")
    fin(vV, lambda i: vRT+i, vW+16)
    A.I(f"buffer_store_dwordx4 v[{vW+16}:{vW+19}], v{vVa}, s[{R_WS}:{R_WS+3}], s{sO+4} offen")
    A.I(f"buffer_store_dwordx4 v[{vW+20}:{vW+23}], v{vVa}, s[{R_WS}:{R_WS+3}], s{sO+4} offen offset:512")
    A.L(end)
    A.I("s_endpgm")
    A.vm = []; A.lg = []

VB = 65536
VS = 1040
def k_attn(A, L, tag):
    end = f"att{tag}_end"
    prologue(A, 256, end, [R_WS])
    A.I(f"s_mov_b32 s{S_LB}, {LB(L):#x}")
    sH, sQB, sT, sK, sM, sIt, sSy1, sSy2, sRe = 70, 71, 72, 73, 74, 75, 76, 77, 78
    QA, QB_, K0, VA0, idx, aK, aVa, aVb = 4, 8, 12, 20, 36, 37, 38, 39
    Kr = [12, 16]; VAr = [20, 28]; VBr = [24, 32]
    SA, SB, OA, OB, CA, CB = 40, 56, 72, 88, 104, 120
    tmp = 136
    A.I(f"s_and_b32 s{sH}, s2, 31"); A.I(f"s_lshr_b32 s{sQB}, s2, 5")
    A.I(f"s_lshl_b32 s{sK}, s{sH}, 16"); A.I(f"s_add_u32 s{sK}, s{sK}, s{S_LB}")
    A.I(f"s_lshl_b32 s{sT}, s{sQB}, 13"); A.I(f"s_add_u32 s{sT}, s{sT}, s{sK}")
    A.I(f"s_lshl_b32 s{sM}, s{S_W}, 11"); A.I(f"s_add_u32 s{sT}, s{sT}, s{sM}")
    A.VM(f"buffer_load_dwordx4 v[{QA}:{QA+3}], v2, s[{R_WS}:{R_WS+3}], s{sT} offen", "q")
    A.VM(f"buffer_load_dwordx4 v[{QB_}:{QB_+3}], v2, s[{R_WS}:{R_WS+3}], s{sT} offen offset:1024", "q")
    A.I(f"s_lshl_b32 s{sM}, s{S_W}, 10")
    A.I(f"s_add_u32 s{sK}, s{sK}, s{sM}")
    A.I(f"s_add_u32 s{sK}, s{sK}, {KF:#x}")
    sV, sMV = 79, 80
    A.I(f"s_add_u32 s{sV}, s{sK}, {VF-KF:#x}")
    A.I(f"s_mul_i32 s{sMV}, s{S_W}, {VS}"); A.I(f"s_add_u32 s{sMV}, s{sMV}, {VB}")
    for r in range(16):
        A.I(f"s_mov_b32 m0, s{sM}")
        A.I(f"s_add_u32 s{sM}, s{sM}, 4096")
        A.VM(f"buffer_load_dwordx4 v2, s[{R_WS}:{R_WS+3}], s{sK} offen lds", f"r{r}")
        A.I(f"s_mov_b32 m0, s{sMV}")
        A.I(f"s_add_u32 s{sMV}, s{sMV}, {4*VS}")
        A.VM(f"buffer_load_dwordx4 v2, s[{R_WS}:{R_WS+3}], s{sV} offen lds", f"r{r}")
        A.I(f"s_add_u32 s{sK}, s{sK}, 4096")
        A.I(f"s_add_u32 s{sV}, s{sV}, 4096")
    for i in range(4): A.I(f"v_mov_b32 v{tmp+i}, 0x3f803f80")
    A.I(f"v_mul_u32_u24 v{tmp+4}, {VS}, v1")
    A.I(f"v_add_u32 v{tmp+4}, {VB+1024}, v{tmp+4}")
    A.I(f"ds_write_b128 v{tmp+4}, v[{tmp}:{tmp+3}]")
    A.I(f"v_mov_b32 v{idx}, 0xdddddddd")
    bK, bVa, bVb = tmp+8, tmp+9, tmp+10
    A.I(f"v_mov_b32 v{bK}, v2")
    A.I(f"v_and_b32 v{bVa}, 15, v1"); A.I(f"v_lshlrev_b32 v{bVa}, 4, v{bVa}")
    A.I(f"v_lshrrev_b32 v{tmp+5}, 5, v1"); A.I(f"v_lshl_or_b32 v{bVa}, v{tmp+5}, 8, v{bVa}")
    A.I(f"v_add_u32 v{bVa}, {VB}, v{bVa}")
    A.I(f"v_add_u32 v{bVb}, 512, v{bVa}")
    A.I(f"v_and_b32 v{tmp+5}, 16, v1")
    A.I(f"v_cmp_ne_u32 vcc, 0, v{tmp+5}")
    A.I(f"v_mov_b32 v{tmp+6}, {VB+1024}")
    A.nop(1)
    A.I(f"v_cndmask_b32 v{bVa}, v{bVa}, v{tmp+6}, vcc")
    A.I(f"v_cndmask_b32 v{bVb}, v{bVb}, v{tmp+6}, vcc")
    for i in range(32): A.I(f"v_mov_b32 v{CA+i}, 0")
    A.I(f"s_mov_b32 s{sSy1}, 1"); A.I(f"s_mov_b32 s{sSy2}, 8"); A.I(f"s_mov_b32 s{sRe}, 0")
    A.I("s_waitcnt lgkmcnt(0)")
    A.wait_vm("r1"); A.I("s_barrier")
    n_sy1 = len([t for t in A.vm if int(t[1:]) > 8])
    start, loop, back = f"att{tag}_start", f"att{tag}_loop", f"att{tag}_back"
    A.L(start)
    A.I(f"v_mov_b32 v{aK}, v{bK}"); A.I(f"v_mov_b32 v{aVa}, v{bVa}"); A.I(f"v_mov_b32 v{aVb}, v{bVb}")
    A.I(f"ds_read_b128 v[{Kr[0]}:{Kr[0]+3}], v{aK}")
    A.I(f"ds_read_b128 v[{VAr[0]}:{VAr[0]+3}], v{aVa}")
    A.I(f"ds_read_b128 v[{VBr[0]}:{VBr[0]+3}], v{aVb}")
    for i in range(32): A.I(f"v_mov_b32 v{OA+i}, 0")
    for i in range(8): A.I(f"v_mov_b32 v{SB+8+i}, 0")
    for i in range(4): A.I(f"v_mov_b32 v{VBr[1]+i}, 0")
    A.I(f"s_mov_b32 s{sIt}, 0")
    A.I("s_waitcnt lgkmcnt(0)")
    mfma(A, v(SA,16), v(Kr[0],4), v(QA,4), v(CA,16))
    A.nop(12)
    U = 4
    A.L(loop)
    A.I(f"s_cmp_eq_u32 s{sIt}, s{sSy1}"); A.I(f"s_cbranch_scc1 att{tag}_sy1")
    A.I(f"s_cmp_eq_u32 s{sIt}, s{sSy2}"); A.I(f"s_cbranch_scc1 att{tag}_sy2")
    A.L(back)
    def ex(S, i): A.I(f"v_exp_f32 v{S+i}, v{S+i}")
    def smf(O, Vr, P): A.I(f"v_smfmac_f32_32x32x32_bf16 v[{O}:{O+15}], v[{Vr}:{Vr+3}], v[{P}:{P+7}], v{idx}")
    for u in range(U):
        p = u & 1; q = p ^ 1
        ex(SA,0); ex(SA,1)
        smf(OB, VBr[q], SB+8)
        ex(SA,2)
        A.I(f"ds_read_b128 v[{Kr[q]}:{Kr[q]+3}], v{aK} offset:{1024*(u+1)}")
        ex(SA,3); ex(SA,4)
        mfma(A, v(SB,16), v(Kr[p],4), v(QB_,4), v(CB,16))
        ex(SA,5)
        A.I(f"ds_read_b128 v[{VAr[q]}:{VAr[q]+3}], v{aVa} offset:{VS*(u+1)}")
        ex(SA,6); ex(SA,7)
        A.I(f"ds_read_b128 v[{VBr[q]}:{VBr[q]+3}], v{aVb} offset:{VS*(u+1)}")
        ex(SA,8); ex(SA,9)
        smf(OA, VAr[p], SA)
        for i in range(10, 16): ex(SA, i)
        ex(SB,0); ex(SB,1)
        smf(OA, VBr[p], SA+8)
        ex(SB,2); ex(SB,3)
        A.I("s_waitcnt lgkmcnt(0)")
        ex(SB,4)
        mfma(A, v(SA,16), v(Kr[q],4), v(QA,4), v(CA,16))
        for i in range(5, 10):
            ex(SB, i)
            if u == U-1 and i == 5: A.I(f"v_add_u32 v{aK}, {1024*U}, v{aK}")
            if u == U-1 and i == 6: A.I(f"s_add_u32 s{sIt}, s{sIt}, 1")
            if u == U-1 and i == 7: A.I(f"v_add_u32 v{aVa}, {VS*U}, v{aVa}")
            if u == U-1 and i == 8: A.I(f"s_cmp_lt_u32 s{sIt}, {64//U}")
        smf(OB, VAr[p], SB)
        for i in range(10, 16):
            ex(SB, i)
            if u == U-1 and i == 10: A.I(f"v_add_u32 v{aVb}, {VS*U}, v{aVb}")
    A.I(f"s_cbranch_scc1 {loop}")
    A.nop(2)
    smf(OB, VBr[(U-1)&1], SB+8)
    A.nop(14)
    A.I(f"s_cmp_lg_u32 s{sRe}, 0"); A.I(f"s_cbranch_scc1 att{tag}_fin")
    A.I(f"s_mov_b32 s{sT}, {f32bits(2.0**-24):#x}"); A.I(f"s_mov_b32 s{sK}, {f32bits(2.0**64):#x}")
    A.I(f"v_cmp_le_f32 s[82:83], s{sT}, v{OA+8}")
    A.I(f"v_cmp_ge_f32 s[84:85], s{sK}, v{OA+8}")
    A.I(f"v_cmp_le_f32 s[86:87], s{sT}, v{OB+8}")
    A.I(f"v_cmp_ge_f32 s[88:89], s{sK}, v{OB+8}")
    A.nop(2)
    A.I("s_and_b64 s[82:83], s[82:83], s[84:85]")
    A.I("s_and_b64 s[86:87], s[86:87], s[88:89]")
    A.I("s_and_b64 s[82:83], s[82:83], s[86:87]")
    A.I("s_cmp_eq_u64 s[82:83], exec")
    A.I(f"s_cbranch_scc0 att{tag}_slow")
    A.L(f"att{tag}_fin")
    A.I(f"s_lshl_b32 s{sT}, s{sQB}, 18"); A.I(f"s_lshl_b32 s{sK}, s{S_W}, 16"); A.I(f"s_add_u32 s{sT}, s{sT}, s{sK}")
    A.I(f"s_lshl_b32 s{sK}, s{sH}, 10"); A.I(f"s_add_u32 s{sT}, s{sT}, s{sK}")
    A.I(f"s_add_u32 s{sT}, s{sT}, s{S_LB}"); A.I(f"s_add_u32 s{sT}, s{sT}, {OF:#x}")
    A.I(f"s_add_u32 s{sK}, s{sT}, 32768")
    for X, (O, so) in enumerate(((OA, sT), (OB, sK))):
        A.I(f"v_rcp_f32 v{tmp}, v{O+8}")
        A.nop(1)
        for i in range(8): A.I(f"v_mul_f32 v{O+i}, v{O+i}, v{tmp}")
        for i in range(4): A.I(f"v_cvt_pk_bf16_f32 v{SA+4*X+i}, v{O+2*i}, v{O+2*i+1}")
        A.I(f"buffer_store_dwordx4 v[{SA+4*X}:{SA+4*X+3}], v2, s[{R_WS}:{R_WS+3}], s{so} offen")
    A.L(end)
    A.I("s_endpgm")
    A.L(f"att{tag}_sy1")
    A.I(f"s_waitcnt vmcnt({n_sy1})"); A.I("s_barrier"); A.I(f"s_branch {back}")
    A.L(f"att{tag}_sy2")
    A.I("s_waitcnt vmcnt(0)"); A.I("s_barrier"); A.I(f"s_branch {back}")
    A.L(f"att{tag}_slow")
    mA, mB = tmp, tmp+1
    A.I(f"v_mov_b32 v{mA}, 0xff800000"); A.I(f"v_mov_b32 v{mB}, 0xff800000")
    A.I(f"v_mov_b32 v{aK}, v{bK}")
    A.I(f"s_mov_b32 s{sIt}, 0")
    A.L(f"att{tag}_mx")
    A.I(f"ds_read_b128 v[{Kr[0]}:{Kr[0]+3}], v{aK}")
    A.I(f"v_add_u32 v{aK}, 1024, v{aK}")
    A.I("s_waitcnt lgkmcnt(0)")
    mfma(A, v(SA,16), v(Kr[0],4), v(QA,4), "0")
    mfma(A, v(SB,16), v(Kr[0],4), v(QB_,4), "0")
    A.nop(16)
    for i in range(8):
        A.I(f"v_max3_f32 v{mA}, v{SA+2*i}, v{SA+2*i+1}, v{mA}")
    for i in range(8):
        A.I(f"v_max3_f32 v{mB}, v{SB+2*i}, v{SB+2*i+1}, v{mB}")
    A.I(f"s_add_u32 s{sIt}, s{sIt}, 1"); A.I(f"s_cmp_lt_u32 s{sIt}, 64"); A.I(f"s_cbranch_scc1 att{tag}_mx")
    for m, Cc in ((mA, CA), (mB, CB)):
        A.I(f"v_mov_b32 v{tmp+2}, v{m}")
        A.nop(2)
        A.I(f"v_permlane32_swap_b32 v{m}, v{tmp+2}")
        A.nop(1)
        A.I(f"v_max_f32 v{m}, v{m}, v{tmp+2}")
        for i in range(16): A.I(f"v_sub_f32 v{Cc+i}, 0, v{m}")
    A.I(f"s_mov_b32 s{sSy1}, -1"); A.I(f"s_mov_b32 s{sSy2}, -1"); A.I(f"s_mov_b32 s{sRe}, 1")
    A.I(f"s_branch {start}")
    A.vm = []; A.lg = []

def k_res(A, L, kind, tag):
    end = f"{kind}{tag}_end"
    final = (kind == 'dn' and L == 1)
    RW = R_WO if kind == 'wo' else R_D
    prologue(A, 256, end, [R_WS, RW] + ([R_OUT] if final else []))
    A.I(f"s_mov_b32 s{S_LB}, {LB(L):#x}")
    KS = 32 if kind == 'wo' else 86
    KH = KS // 2
    SRC = OF if kind == 'wo' else HF
    RES = (XF_ - LSTR) if kind == 'wo' else XA
    DST = XA if kind == 'wo' else XF_
    STO = STA if kind == 'wo' else STF
    NSL = min(KH, 40)
    sTp, sC, sTw, sKh, sTT, sAo, sWo, sM, sT, sCt = 70, 71, 72, 73, 74, 75, 76, 77, 78, 79
    A.I(f"s_and_b32 s{sTp}, s2, 31"); A.I(f"s_lshr_b32 s{sC}, s2, 5")
    A.I(f"s_and_b32 s{sTw}, s{S_W}, 1"); A.I(f"s_lshr_b32 s{sKh}, s{S_W}, 1")
    A.I(f"s_lshl_b32 s{sTT}, s{sTp}, 1"); A.I(f"s_add_u32 s{sTT}, s{sTT}, s{sTw}")
    vWo, vTr, vRes, vW, acc0, acc1, vTmp = 4, 5, 12, 20, 36, 52, 68
    A.I(f"s_mul_i32 s{sAo}, s{sTT}, {KS*1024}")
    A.I(f"s_mul_i32 s{sT}, s{sKh}, {KH*1024}")
    A.I(f"s_add_u32 s{sAo}, s{sAo}, s{sT}")
    A.I(f"s_add_u32 s{sAo}, s{sAo}, s{S_LB}"); A.I(f"s_add_u32 s{sAo}, s{sAo}, {SRC:#x}")
    A.I(f"v_lshrrev_b32 v{vWo}, 3, v1"); A.I(f"v_lshlrev_b32 v{vWo}, 10, v{vWo}")
    A.I(f"v_bfe_u32 v9, v1, 4, 1"); A.I(f"v_lshlrev_b32 v9, 2, v9")
    A.I(f"v_and_b32 v10, 7, v1"); A.I(f"v_xor_b32 v9, v9, v10")
    A.I(f"v_lshl_add_u32 v{vWo}, v9, 4, v{vWo}")
    A.I(f"s_mul_i32 s{sWo}, s{sKh}, {KH*16*1024}")
    A.I(f"s_lshl_b32 s{sT}, s{sTw}, 13"); A.I(f"s_add_u32 s{sWo}, s{sWo}, s{sT}")
    A.I(f"s_lshl_b32 s{sT}, s{sC}, 7"); A.I(f"s_add_u32 s{sWo}, s{sWo}, s{sT}")
    sM0 = 80
    A.I(f"s_mul_i32 s{sM0}, s{sKh}, {NSL*2048}")
    A.I(f"s_lshl_b32 s{sT}, s{sTw}, 10"); A.I(f"s_add_u32 s{sM0}, s{sM0}, s{sT}")
    issued = [0]
    def issue(n):
        for _ in range(n):
            i = issued[0]
            if i >= KH: return
            A.I(f"s_add_u32 m0, s{sM0}, {(i % NSL)*2048}")
            A.VM(f"buffer_load_dwordx4 a[{4*i}:{4*i+3}], v2, s[{R_WS}:{R_WS+3}], s{sAo} offen offset:{1024*(i%4)}", f"k{i}")
            A.VM(f"buffer_load_dwordx4 v{vWo}, s[{RW}:{RW+3}], s{sWo} offen lds", f"k{i}")
            A.I(f"s_add_u32 s{sWo}, s{sWo}, 16384")
            if i % 4 == 3: A.I(f"s_add_u32 s{sAo}, s{sAo}, 4096")
            issued[0] += 1
    first = min(KH, 28)
    issue(first)
    A.I(f"s_lshl_b32 s{sCt}, s{sC}, 1"); A.I(f"s_add_u32 s{sCt}, s{sCt}, s{sKh}")
    sR = 81
    A.I(f"s_lshl_b32 s{sR}, s{sTT}, 15"); A.I(f"s_lshl_b32 s{sT}, s{sCt}, 11"); A.I(f"s_add_u32 s{sR}, s{sR}, s{sT}")
    A.I(f"s_add_u32 s{sR}, s{sR}, s{S_LB}")
    A.I(f"s_add_u32 s{sT}, s{sR}, {RES & 0xffffffff:#x}")
    A.VM(f"buffer_load_dwordx4 v[{vRes}:{vRes+3}], v2, s[{R_WS}:{R_WS+3}], s{sT} offen", "res")
    A.VM(f"buffer_load_dwordx4 v[{vRes+4}:{vRes+7}], v2, s[{R_WS}:{R_WS+3}], s{sT} offen offset:1024", "res")
    A.I(f"v_lshrrev_b32 v{vTr}, 5, v1"); A.I(f"v_lshlrev_b32 v{vTr}, 9, v{vTr}")
    A.I(f"v_bfe_u32 v9, v1, 2, 2"); A.I(f"v_lshl_add_u32 v{vTr}, v9, 7, v{vTr}")
    A.I(f"v_bfe_u32 v9, v1, 3, 1"); A.I(f"v_lshl_add_u32 v{vTr}, v9, 6, v{vTr}")
    A.I(f"v_bfe_u32 v9, v1, 4, 1"); A.I(f"v_lshl_add_u32 v{vTr}, v9, 5, v{vTr}")
    A.I(f"v_and_b32 v9, 3, v1"); A.I(f"v_lshl_add_u32 v{vTr}, v9, 3, v{vTr}")
    A.I(f"s_mul_i32 s{sT}, s{sKh}, {NSL*2048}")
    A.I(f"v_add_u32 v{vTr}, s{sT}, v{vTr}")
    A.I(f"v_xor_b32 v{vTr+1}, 64, v{vTr}")
    A.I(f"v_add_u32 v{vTr+2}, {20*2048}, v{vTr}")
    A.I(f"v_add_u32 v{vTr+3}, {20*2048}, v{vTr+1}")
    for i in range(32): A.I(f"v_mov_b32 v{acc0+i}, 0")
    def reads(i):
        sl = i % NSL
        hi = 2 if sl >= 20 else 0
        o = (sl % 20) * 2048 if sl >= 20 else sl * 2048
        p = vW + 8*(i & 1)
        for sidx in range(2):
            A.LD(f"ds_read_b64_tr_b16 v[{p+4*sidx}:{p+4*sidx+1}], v{vTr+hi+sidx} offset:{o}", f"k{i}")
            A.LD(f"ds_read_b64_tr_b16 v[{p+4*sidx+2}:{p+4*sidx+3}], v{vTr+hi+sidx} offset:{o+1024}", f"k{i}")
    G = 4
    def sync(i):
        A.wait_vm(f"k{min(i+G, KH)-1}"); A.I("s_barrier")
        if i >= G: issue(G)
    sync(0)
    reads(0)
    for i in range(KH):
        if i + 1 < KH:
            if (i + 1) % G == 0: sync(i + 1)
            reads(i + 1)
        A.wait_lg(f"k{i}")
        p = vW + 8*(i & 1)
        mfma(A, v(acc0,16), v(p,4), a(4*i,4))
        mfma(A, v(acc1,16), v(p+4,4), a(4*i,4))
    assert issued[0] == KH
    A.I("s_barrier")
    A.I(f"s_lshl_b32 s{sT}, s{S_W}, 12")
    A.I(f"v_add_u32 v{vTmp}, s{sT}, v2")
    A.I(f"s_xor_b32 s{sT}, s{sT}, 8192")
    A.I(f"v_add_u32 v{vTmp+1}, s{sT}, v2")
    A.nop(10)
    lab1, lab2 = f"{kind}{tag}_x1", f"{kind}{tag}_x2"
    A.I(f"s_cmp_eq_u32 s{sKh}, 0"); A.I(f"s_cbranch_scc1 {lab1}")
    for q in range(4): A.I(f"ds_write_b128 v{vTmp}, v[{acc0+4*q}:{acc0+4*q+3}] offset:{1024*q}")
    for i in range(16): A.I(f"v_mov_b32 v{acc0+i}, v{acc1+i}") if False else None
    A.I("s_waitcnt lgkmcnt(0)")
    for i in range(16): A.I(f"v_mov_b32 v{acc0+i}, v{acc1+i}")
    A.I(f"s_branch {lab2}")
    A.L(lab1)
    for q in range(4): A.I(f"ds_write_b128 v{vTmp}, v[{acc1+4*q}:{acc1+4*q+3}] offset:{1024*q}")
    A.I("s_waitcnt lgkmcnt(0)")
    A.L(lab2)
    A.I("s_barrier")
    for q in range(4): A.I(f"ds_read_b128 v[{acc1+4*q}:{acc1+4*q+3}], v{vTmp+1} offset:{1024*q}")
    A.wait_vm("res")
    for i in range(8):
        A.I(f"v_lshlrev_b32 v{vW}, 16, v{vRes+i}")
        A.I(f"v_and_b32 v{vW+1}, 0xffff0000, v{vRes+i}")
        A.I(f"v_add_f32 v{acc0+2*i}, v{acc0+2*i}, v{vW}")
        A.I(f"v_add_f32 v{acc0+2*i+1}, v{acc0+2*i+1}, v{vW+1}")
    A.I("s_waitcnt lgkmcnt(0)")
    for i in range(16): A.I(f"v_add_f32 v{acc0+i}, v{acc0+i}, v{acc1+i}")
    for i in range(8): A.I(f"v_cvt_pk_bf16_f32 v{vRes+i}, v{acc0+2*i}, v{acc0+2*i+1}")
    if not final:
        A.I(f"s_add_u32 s{sT}, s{sR}, {DST:#x}")
        A.I(f"buffer_store_dwordx4 v[{vRes}:{vRes+3}], v2, s[{R_WS}:{R_WS+3}], s{sT} offen")
        A.I(f"buffer_store_dwordx4 v[{vRes+4}:{vRes+7}], v2, s[{R_WS}:{R_WS+3}], s{sT} offen offset:1024")
        sm, sq = vTmp+2, vTmp+3
        A.I(f"v_add_f32 v{sm}, v{acc0}, v{acc0+1}"); A.I(f"v_mul_f32 v{sq}, v{acc0}, v{acc0}")
        A.I(f"v_fmac_f32 v{sq}, v{acc0+1}, v{acc0+1}")
        for i in range(2, 16):
            A.I(f"v_add_f32 v{sm}, v{sm}, v{acc0+i}"); A.I(f"v_fmac_f32 v{sq}, v{acc0+i}, v{acc0+i}")
        A.I(f"s_lshl_b32 s{sT}, s{sTT}, 12"); A.I(f"s_add_u32 s{sT}, s{sT}, s{S_LB}"); A.I(f"s_add_u32 s{sT}, s{sT}, {STO:#x}")
        stats_store(A, sm, sq, vTmp+4, sT, sCt)
    else:
        A.nop(2)
        for b in (0, 4):
            A.I(f"v_permlane32_swap_b32 v{vRes+b}, v{vRes+b+2}")
            A.I(f"v_permlane32_swap_b32 v{vRes+b+1}, v{vRes+b+3}")
        A.I(f"v_and_b32 v{vTmp}, 31, v1"); A.I(f"v_lshlrev_b32 v{vTmp}, 10, v{vTmp}")
        A.I(f"v_lshrrev_b32 v{vTmp+1}, 5, v1"); A.I(f"v_lshl_add_u32 v{vTmp}, v{vTmp+1}, 4, v{vTmp}")
        A.I(f"s_lshl_b32 s{sT}, s{sTT}, 15"); A.I(f"s_lshl_b32 s{sR}, s{sCt}, 6"); A.I(f"s_add_u32 s{sT}, s{sT}, s{sR}")
        A.I(f"buffer_store_dwordx4 v[{vRes}:{vRes+3}], v{vTmp}, s[{R_OUT}:{R_OUT+3}], s{sT} offen")
        A.I(f"buffer_store_dwordx4 v[{vRes+4}:{vRes+7}], v{vTmp}, s[{R_OUT}:{R_OUT+3}], s{sT} offen offset:32")
    A.L(end)
    A.I("s_endpgm")
    A.vm = []; A.lg = []

GSL = 6208
def k_gu(A, L, tag):
    end = f"gu{tag}_end"
    prologue(A, 240, end, [R_WS, R_G, R_U])
    A.I(f"s_mov_b32 s{S_LB}, {LB(L):#x}")
    sI, sU0, sTT, sXo, sWo, sT, sMb = 70, 71, 72, 73, 74, 75, 76
    A.I(f"s_and_b32 s{sI}, s2, 15"); A.I(f"s_lshr_b32 s{sU0}, s2, 4")
    A.I(f"s_mul_i32 s{sU0}, s{sU0}, 6"); A.I(f"s_min_u32 s{sU0}, s{sU0}, 80")
    A.I(f"s_lshl_b32 s{sTT}, s{sI}, 2"); A.I(f"s_add_u32 s{sTT}, s{sTT}, s{S_W}")
    vWo = 4
    vTr = 8
    vST, vCS, vMF, vMean, vRstd, vTmp = 12, 28, 52, 56, 57, 58
    vW = 64
    acc = 112
    NSL = 26
    A.I(f"s_lshl_b32 s{sT}, s{sTT}, 12"); A.I(f"s_add_u32 s{sT}, s{sT}, s{S_LB}"); A.I(f"s_add_u32 s{sT}, s{sT}, {STA:#x}")
    stats_load(A, vST, sT)
    A.I(f"s_lshl_b32 s{sXo}, s{sTT}, 15"); A.I(f"s_add_u32 s{sXo}, s{sXo}, s{S_LB}"); A.I(f"s_add_u32 s{sXo}, s{sXo}, {XA:#x}")
    for ph in range(3):
        A.I(f"v_add_u32 v7, {64*ph}, v1")
        A.I(f"v_mul_u32_u24 v{vWo+ph}, 5462, v7"); A.I(f"v_lshrrev_b32 v{vWo+ph}, 16, v{vWo+ph}")
        A.I(f"v_mul_u32_u24 v11, 12, v{vWo+ph}"); A.I(f"v_sub_u32 v7, v7, v11")
        A.I(f"v_mul_u32_u24 v{vWo+ph}, 2752, v{vWo+ph}")
        A.I(f"v_lshl_add_u32 v{vWo+ph}, v7, 4, v{vWo+ph}")
    A.I(f"s_mul_i32 s{sWo}, s{S_W}, {16*2752}"); A.I(f"s_lshl_b32 s{sT}, s{sU0}, 5"); A.I(f"s_add_u32 s{sWo}, s{sWo}, s{sT}")
    A.I(f"s_mul_i32 s{sMb}, s{S_W}, {GSL}")
    def issue(g, withx=True):
        base = 4*g*GSL
        if g < 6:
            A.I(f"s_add_u32 s{sT}, s{sMb}, {base}")
        elif g == 6:
            A.I(f"s_add_u32 s{sT}, s{sMb}, {base}")
            A.I(f"s_sub_u32 s{sT+20}, s{sT}, {NSL*GSL}")
            A.I(f"s_cmp_ge_u32 s{S_W}, 2"); A.I(f"s_cselect_b32 s{sT}, s{sT+20}, s{sT}")
        else:
            A.I(f"s_add_u32 s{sT}, s{sMb}, {base - NSL*GSL}")
        for m, R in ((0, R_G), (1, R_U)):
            for ph in range(3):
                A.I(f"s_add_u32 m0, s{sT}, {m*3104 + ph*1024}")
                j = m*3 + ph
                if withx and j < 4:
                    ks = 4*g + j
                    A.VM(f"buffer_load_dwordx4 a[{4*ks}:{4*ks+3}], v2, s[{R_WS}:{R_WS+3}], s{sXo} offen offset:{1024*j}", f"g{g}")
                else:
                    A.nop(1)
                A.VM(f"buffer_load_dwordx4 v{vWo+ph}, s[{R}:{R+3}], s{sWo} offen lds", f"g{g}")
        A.I(f"s_add_u32 s{sWo}, s{sWo}, {64*2752}")
        A.I(f"s_add_u32 s{sXo}, s{sXo}, 4096")
    for g in range(5): issue(g)
    A.I(f"v_lshrrev_b32 v7, 5, v1"); A.I(f"v_lshlrev_b32 v7, 2, v7"); A.I(f"v_bfe_u32 v11, v1, 2, 2"); A.I(f"v_add_u32 v7, v7, v11")
    A.I(f"v_mul_u32_u24 v{vTr}, 192, v7")
    A.I(f"v_and_b32 v7, 3, v1"); A.I(f"v_lshl_add_u32 v{vTr}, v7, 3, v{vTr}")
    A.I(f"v_bfe_u32 v7, v1, 4, 1"); A.I(f"v_mul_u32_u24 v7, 3104, v7"); A.I(f"v_add_u32 v{vTr}, v{vTr}, v7")
    A.I(f"v_add_u32 v{vTr+1}, {10*GSL}, v{vTr}"); A.I(f"v_add_u32 v{vTr+2}, {20*GSL}, v{vTr}")
    for i in range(96): A.I(f"v_mov_b32 v{acc+i}, 0")
    stats_finish(A, vST, vMean, vRstd, vMF, vTmp)
    def reads(ks):
        sl = ks % NSL
        b = vTr + sl // 10
        o = (sl % 10) * GSL
        p = vW + 24*(ks & 1)
        for u in range(6):
            A.LD(f"ds_read_b64_tr_b16 v[{p+4*u}:{p+4*u+1}], v{b} offset:{o+32*u}", f"k{ks}u{u}")
            A.LD(f"ds_read_b64_tr_b16 v[{p+4*u+2}:{p+4*u+3}], v{b} offset:{o+32*u+8*192}", f"k{ks}u{u}")
    def sync(g):
        A.wait_vm(f"g{g}"); A.I("s_barrier")
        if g == 1: issue(5)
        if g == 2: issue(6)
        if g == 3:
            issue(7)
            A.I(f"s_lshl_b32 s{sT}, s{sU0}, 10"); A.I(f"s_add_u32 s{sT}, s{sT}, {CSG:#x}")
            for u in range(6):
                if u == 4: A.I(f"s_add_u32 s{sT}, s{sT}, 4096")
                A.VM(f"buffer_load_dwordx4 v[{vCS+4*u}:{vCS+4*u+3}], v2, s[{R_WS}:{R_WS+3}], s{sT} offen offset:{1024*(u%4)}", "cs")
    sync(0)
    reads(0)
    for ks in range(32):
        p = vW + 24*(ks & 1)
        nxt = ks + 1 < 32
        if nxt and (ks + 1) % 4 == 0: sync((ks + 1)//4)
        if nxt:
            sl = (ks+1) % NSL; b = vTr + sl // 10; o = (sl % 10) * GSL; pn = vW + 24*((ks+1) & 1)
        for u in range(6):
            A.wait_lg(f"k{ks}u{u}")
            mfma(A, v(acc+16*u,16), v(p+4*u,4), a(4*ks,4))
            if nxt:
                A.LD(f"ds_read_b64_tr_b16 v[{pn+4*u}:{pn+4*u+1}], v{b} offset:{o+32*u}", f"k{ks+1}u{u}")
                A.LD(f"ds_read_b64_tr_b16 v[{pn+4*u+2}:{pn+4*u+3}], v{b} offset:{o+32*u+8*192}", f"k{ks+1}u{u}")
    A.wait_vm("cs")
    for u in range(6):
        mfma(A, v(acc+16*u,16), v(vCS+4*u,4), v(vMF,4))
    A.I(f"v_mul_f32 v{vTmp}, v{vRstd}, v{vRstd}")
    A.I(f"s_mul_i32 s{sT}, s{sTT}, 86"); A.I(f"s_add_u32 s{sT}, s{sT}, s{sU0}"); A.I(f"s_lshl_b32 s{sT}, s{sT}, 10")
    A.I(f"s_add_u32 s{sT}, s{sT}, s{S_LB}"); A.I(f"s_add_u32 s{sT}, s{sT}, {HF:#x}")
    A.nop(4)
    for u in range(6):
        b = acc + 16*u
        for i in range(8): A.I(f"v_mul_f32 v{b+i}, v{b+i}, v{vTmp}")
        for i in range(8): A.I(f"v_mul_f32 v{b+i}, v{b+i}, v{b+8+i}")
        for i in range(4): A.I(f"v_cvt_pk_bf16_f32 v{vW+4*u+i}, v{b+2*i}, v{b+2*i+1}")
        if u == 4: A.I(f"s_add_u32 s{sT}, s{sT}, 4096")
        A.I(f"buffer_store_dwordx4 v[{vW+4*u}:{vW+4*u+3}], v2, s[{R_WS}:{R_WS+3}], s{sT} offen offset:{1024*(u%4)}")
    A.L(end)
    A.I("s_endpgm")
    A.vm = []; A.lg = []

def descriptor(name, nv, acc):
    return f""".section .rodata,"a"
.p2align 6
.amdhsa_kernel {name}
  .amdhsa_next_free_vgpr {nv}
  .amdhsa_next_free_sgpr 102
  .amdhsa_accum_offset {acc}
  .amdhsa_group_segment_fixed_size 0
  .amdhsa_kernarg_size 80
  .amdhsa_user_sgpr_count 2
  .amdhsa_user_sgpr_kernarg_segment_ptr 1
  .amdhsa_system_sgpr_workgroup_id_x 1
.end_amdhsa_kernel
"""

def main(out):
    ks = []
    def add(name, fn, grid, lds, nv, acc):
        A = Asm(); fn(A)
        ks.append((name, grid, lds, nv, acc, A.text()))
    add("prep_kernel", k_prep, 256, 32768, 128, 128)
    for L in (0, 1):
        add(f"qkv{L}_kernel", lambda A: k_qkv(A, L, L), 256, 98304 + 512, 384, 256)
        add(f"att{L}_kernel", lambda A: k_attn(A, L, L), 256, VB + 65*VS + 1024, 256, 256)
        add(f"wo{L}_kernel", lambda A: k_res(A, L, 'wo', L), 256, 65536, 384, 128)
        add(f"gu{L}_kernel", lambda A: k_gu(A, L, L), 240, 26*GSL, 384, 256)
        add(f"dn{L}_kernel", lambda A: k_res(A, L, 'dn', L), 256, 163840, 384, 128)
    hdr = open("cdna_kernels/" + NAME + ".s.ref").read().split("; Override launch")[0]
    txt = hdr
    for name, grid, lds, nv, acc, _ in ks:
        txt += f"; @launch kernel={name} grid=({grid},1,1) block=(256,1,1) lds={lds}\n"
    txt += '.amdgcn_target "amdgcn-amd-amdhsa--gfx950"\n'
    for name, grid, lds, nv, acc, body in ks:
        txt += f".text\n.globl {name}\n.p2align 8\n.type {name},@function\n{name}:\n" + body
        txt += descriptor(name, nv, acc)
    open(out, "w").write(txt)

if __name__ == "__main__":
    main(sys.argv[1] if len(sys.argv) > 1 else "cdna_kernels/" + NAME + ".s")
```

```python
import sys, math
from asmlib import *

NAME = "interleave_layers__mha_block__glu_gated_bilinear__prompt"
LSTR = 0x1400000
QF, KF, VF, OF, XA, XF_, HF, STA, STF = 0, 0x200000, 0x400000, 0x600000, 0x800000, 0xA00000, 0xC00000, 0x1180000, 0x11C0000
FLG = 0x1300000
F_QKV, F_ATT, F_WO, F_GU, F_DN, F_RF = [FLG + 1024*i for i in range(6)]
WFQ = 0
WFG = 0x200000
CSQ = 0x1200000 + LSTR
CSG = 0x1210000 + LSTR
WS_USED = 3 * LSTR
DBGO = 2 * LSTR + 0x1310000
def LB(L): return (L + 1) * LSTR
M32 = 0xffffffff

S_W = 3
P_AX, P_WQKV, P_WO, P_BX, P_G, P_U, P_D, P_OUT, P_DBG, P_WS = 16, 18, 20, 22, 24, 26, 28, 30, 32, 34
R_WS, R_WQKV, R_WO, R_G, R_U, R_D, R_AX, R_OUT = 36, 40, 44, 48, 52, 56, 60, 64
S_LB, S_L = 68, 69
R_DBG = 4
S_SPIN, S_X, S_R, S_XCC = 8, 9, 10, 11
LOG2E = 1.4426950408889634
WSR = f"s[{R_WS}:{R_WS+3}]"
def SR(r): return f"s[{r}:{r+3}]"
V_RES = 248
V_FL, V_T64, V_T128, V_DQ, V_DR, V_DG, V_DG2, V_KA, V_VA, V_RANK, V_ROW, V_LN = 247, 246, 245, 244, 243, 242, 241, 240, 239, 238, 237, 234
LD = " sc1"
class Mode:
    local = True
def STL(): return "" if Mode.local else " sc1"
def FLL(): return "" if Mode.local else " sc0 sc1"

INSTR = 0
STN = []
NPL = 64
def stamp(A, name):
    if not INSTR: return
    if name not in STN: STN.append(name)
    i = STN.index(name)
    A.I("s_memrealtime s[98:99]" if INSTR == 2 else "s_memtime s[98:99]")
    A.I("s_waitcnt lgkmcnt(0)")
    A.I(f"v_writelane_b32 v236, s98, {i}")
    A.lg = []

def srd(A, r, p, nbytes):
    A.I(f"s_mov_b32 s{r}, s{p}"); A.I(f"s_and_b32 s{r+1}, s{p+1}, 0xffff")
    A.I(f"s_mov_b32 s{r+2}, {nbytes:#x}"); A.I(f"s_mov_b32 s{r+3}, 0x20000")

def mfma(A, d, x, y, c=None):
    c = d if c is None else c
    A.I(f"v_mfma_f32_32x32x16_bf16 {d}, {x}, {y}, {c}")

WIN = 61440
def win(addr): return addr // WIN, addr % WIN
def mk_windows(A, dst, src, n=3, stride=1):
    for k in range(n):
        if k == 0 and dst == src: continue
        A.I(f"v_add_u32 v{dst+stride*k}, {k*WIN}, v{src}" if k else f"v_mov_b32 v{dst}, v{src}")

class Feeder:
    def __init__(self, A): self.A = A; self.q = []; self.n = 0
    def add(self, fn): self.q.append(fn)
    def emit(self, n=1):
        for _ in range(n):
            if self.q: self.q.pop(0)(); self.n += 1
    def flush(self): self.emit(len(self.q))
    def __len__(self): return len(self.q)

def ilist(A, L):
    F = Feeder(A)
    for i in L:
        if isinstance(i, tuple):
            F.add((lambda i=i: A.LD(i[1], i[2])) if i[0] == 'ds' else (lambda i=i: A.VM(i[1], i[2])))
        else: F.add(lambda i=i: A.I(i))
    return F

def stats_load(A, dst, s_off):
    for q in range(4):
        A.VM(f"buffer_load_dwordx4 v[{dst+4*q}:{dst+4*q+3}], v2, {WSR}, s{s_off} offen offset:{1024*q}{LD}", "stats")
def stats_reduce_list(src):
    L = []
    for k in (8, 4, 2):
        for i in range(k): L.append(f"v_add_f32 v{src+i}, v{src+i}, v{src+i+k}")
    return L
def stats_fin_list(src, vmean, vrstd, mfrag, tmp):
    return [f"v_mov_b32 v{tmp}, v{src}", f"v_mov_b32 v{tmp+1}, v{src+1}", "s_nop 0",
          f"v_permlane32_swap_b32 v{src}, v{tmp}", f"v_permlane32_swap_b32 v{src+1}, v{tmp+1}",
          f"v_add_f32 v{src}, v{src}, v{tmp}", f"v_add_f32 v{src+1}, v{src+1}, v{tmp+1}",
          f"v_mul_f32 v{vmean}, {1.0/512}, v{src}", f"v_mul_f32 v{src+1}, {1.0/512}, v{src+1}",
          f"v_fma_f32 v{src+1}, -v{vmean}, v{vmean}, v{src+1}", f"v_max_f32 v{src+1}, 0, v{src+1}",
          f"v_add_f32 v{src+1}, {f32bits(1e-5):#x}, v{src+1}", f"v_rsq_f32 v{vrstd}, v{src+1}",
          f"v_sub_f32 v{tmp}, 0, v{vmean}", f"v_cvt_pk_bf16_f32 v{tmp+1}, v{tmp}, v{tmp}",
          f"v_and_b32 v{tmp+1}, 0xffff0000, v{tmp+1}", f"v_sub_f32 v{tmp+2}, v{tmp}, v{tmp+1}",
          f"v_cvt_pk_bf16_f32 v{mfrag}, v{tmp+1}, v{tmp+2}"] + [f"v_mov_b32 v{mfrag+i}, v{mfrag}" for i in (1, 2, 3)]
def rstd_tr_list(lds, vrstd, vRT, tmp, st):
    return [f"s_lshl_b32 s{st}, s{S_W}, 7", f"s_add_u32 s{st}, s{st}, {lds}",
          f"v_and_b32 v{tmp}, 31, v1", f"v_lshlrev_b32 v{tmp}, 2, v{tmp}", f"v_add_u32 v{tmp}, s{st}, v{tmp}",
          ("ds", f"ds_write_b32 v{tmp}, v{vrstd}", "rw"),
          f"v_lshrrev_b32 v{tmp+1}, 5, v1", f"v_lshlrev_b32 v{tmp+1}, 4, v{tmp+1}", f"v_add_u32 v{tmp+1}, s{st}, v{tmp+1}"] + \
         [("ds", f"ds_read_b128 v[{vRT+4*q}:{vRT+4*q+3}], v{tmp+1} offset:{32*q}", "rt") for q in range(4)]

def post_store(A, flagbase, s_idx, pol):
    lab = A.label("nopost")
    A.I(f"s_cmp_lg_u32 s{S_W}, 0"); A.I(f"s_cbranch_scc1 {lab}")
    A.I(f"s_lshl_b32 s96, s{s_idx}, 2"); A.I(f"s_add_u32 s96, s96, s{S_LB}"); A.I(f"s_add_u32 s96, s96, {flagbase & M32:#x}")
    A.I("v_mov_b32 v3, 1"); A.I("s_mov_b64 exec, 1")
    A.I(f"buffer_store_dword v3, v2, {WSR}, s96 offen{pol}")
    A.I("s_mov_b64 exec, -1")
    A.L(lab)
def post_flag(A, flagbase, s_idx, pol):
    A.wait_vm("st"); A.I("s_barrier")
    post_store(A, flagbase, s_idx, pol)

def poll(A, flagbase, s_first, n):
    lab = A.label("poll")
    A.I(f"s_lshl_b32 s96, s{s_first}, 2"); A.I(f"s_add_u32 s96, s96, s{S_LB}"); A.I(f"s_add_u32 s96, s96, {flagbase & M32:#x}")
    A.I(f"s_mov_b32 s{S_SPIN}, 0")
    A.I(f"s_mov_b32 exec_lo, {(1 << n) - 1:#x}"); A.I("s_mov_b32 exec_hi, 0")
    A.L(lab)
    A.I(f"buffer_load_dword v3, v{V_FL}, {WSR}, s96 offen sc0 sc1")
    A.I(f"s_add_u32 s{S_SPIN}, s{S_SPIN}, 1")
    A.I(f"s_cmp_gt_u32 s{S_SPIN}, 0x80000"); A.I("s_cbranch_scc1 L_abort")
    A.I("s_waitcnt vmcnt(0)")
    A.I("v_cmp_eq_u32 vcc, 1, v3")
    A.nop(2)
    A.I("s_cmp_eq_u64 vcc, exec")
    A.I(f"s_cbranch_scc0 {lab}")
    A.I("s_mov_b64 exec, -1")
    A.vm = []

WO_BLK = [135168 + 4096*p for p in range(7)] + [4096*p for p in range(9)]
WO_EX = 36864
GU_GRP = [53248 + 8192*g for g in range(8)] + [118784, 126976, 135168, 143360, 151552, 0, 8192, 16384] + \
         [24576, 32768, 40960] + [53248 + 8192*g for g in range(5)]
DN_BLK = [94208 + 4096*p for p in range(6)] + [118784 + 4096*p for p in range(11)] + [4096*p for p in range(6)] + [49152] + \
         [24576 + 4096*p for p in range(6)] + [53248 + 4096*p for p in range(10)] + [94208 + 4096*p for p in range(3)]
DN_EX = 118784
QK_GRP = [0, 12288, 24576, 36864, 106496, 135168, 147456, 53248]
QK_SCR = 159744
assert len(DN_BLK) == 43 and len(GU_GRP) == 24

def coords_ij(A, sI, sJ):
    A.I(f"s_lshl_b32 s{sI}, s{S_X}, 1"); A.I(f"s_and_b32 s{sJ}, s{S_R}, 1"); A.I(f"s_add_u32 s{sI}, s{sI}, s{sJ}")
    A.I(f"s_lshr_b32 s{sJ}, s{S_R}, 1")
def coords_tc(A, sT, sC):
    A.I(f"s_lshl_b32 s{sT}, s{S_X}, 2"); A.I(f"s_and_b32 s{sC}, s{S_R}, 3"); A.I(f"s_add_u32 s{sT}, s{sT}, s{sC}")
    A.I(f"s_lshr_b32 s{sC}, s{S_R}, 2")

def qkv_w_feeder(A, grp, raw=False):
    F = Feeder(A); sO, sM = 92, 93
    for g in range(8):
        for q in range(3):
            def f(g=g, q=q):
                if g == 0 and q == 0:
                    A.I(f"s_lshr_b32 s{sO}, s{S_R}, 1")
                    if raw:
                        A.I(f"s_lshl_b32 s{sO}, s{sO}, 6"); A.I(f"s_mul_i32 s{sM}, s{S_W}, 49152"); A.I(f"s_add_u32 s{sO}, s{sO}, s{sM}")
                        A.I(f"s_mul_i32 s{sM}, s{S_W}, 3072")
                    else:
                        A.I(f"s_mul_i32 s{sO}, s{sO}, 98304"); A.I(f"s_mul_i32 s{sM}, s{S_W}, 3072"); A.I(f"s_add_u32 s{sO}, s{sO}, s{sM}")
                        A.I(f"s_cmp_eq_u32 s{S_L}, 1"); A.I(f"s_cselect_b32 s{sO}, 0xf0000000, s{sO}")
                A.I(f"s_add_u32 m0, s{sM}, {grp[g]}")
                A.nop(1)
                if raw: A.VM(f"buffer_load_dwordx4 v{V_DQ}, {SR(R_WQKV)}, s{sO} offen offset:{1024*q} lds", f"wq{g}")
                else: A.VM(f"buffer_load_dwordx4 v2, {WSR}, s{sO} offen offset:{1024*q}{LD} lds", f"wq{g}")
                if q == 2 and g < 7: A.I(f"s_add_u32 s{sO}, s{sO}, {196608 if raw else 12288}")
            F.add(f)
    return F

def res_w_feeder(A, kind):
    KH = 16 if kind == 'wo' else 43
    RW, BLK, sO, sM = (R_WO, WO_BLK, 80, 81) if kind == 'wo' else (R_D, DN_BLK, 88, 89)
    F = Feeder(A)
    for i in range(KH):
        def f(i=i):
            if i == 0:
                A.I(f"s_lshr_b32 s{sO}, s{S_W}, 1"); A.I(f"s_mul_i32 s{sO}, s{sO}, {KH*16384}")
                A.I(f"s_and_b32 s{sM}, s{S_W}, 1"); A.I(f"s_lshl_b32 s{sM}, s{sM}, 13"); A.I(f"s_add_u32 s{sO}, s{sO}, s{sM}")
                A.I(f"s_lshr_b32 s{sM}, s{S_R}, 2"); A.I(f"s_lshl_b32 s{sM}, s{sM}, 7"); A.I(f"s_add_u32 s{sO}, s{sO}, s{sM}")
                A.I(f"s_lshl_b32 s{sM}, s{S_W}, 10")
            A.I(f"s_add_u32 m0, s{sM}, {BLK[i]}")
            A.nop(1)
            A.VM(f"buffer_load_dwordx4 v{V_DR}, {SR(RW)}, s{sO} offen lds", f"w{kind}{i}")
            A.I(f"s_add_u32 s{sO}, s{sO}, 16384")
        F.add(f)
    return F

def gu_u0(A, dst):
    A.I(f"s_lshr_b32 s{dst}, s{S_R}, 1"); A.I(f"s_mul_i32 s{dst}, s{dst}, 6"); A.I(f"s_min_u32 s{dst}, s{dst}, 80")
def gu_w_feeder(A):
    F = Feeder(A); sO, sM = 84, 85
    for G in range(24):
        for m in range(2):
            def f(G=G, m=m):
                if G == 0 and m == 0:
                    gu_u0(A, sO); A.I(f"s_lshl_b32 s{sO}, s{sO}, 15"); A.I(f"s_lshl_b32 s{sM}, s{S_W}, 11")
                    A.I(f"s_add_u32 s{sO}, s{sO}, s{sM}"); A.I(f"s_add_u32 s{sO}, s{sO}, {WFG:#x}")
                A.I(f"s_add_u32 m0, s{sM}, {GU_GRP[G]}")
                A.nop(1)
                A.VM(f"buffer_load_dwordx4 v2, {WSR}, s{sO} offen offset:{1024*m}{LD} lds", f"wg{G}")
                if m == 1: A.I(f"s_add_u32 s{sO}, s{sO}, 8192")
            F.add(f)
    return F

def setup(A):
    A.I("s_cmp_ge_u32 s2, 256"); A.I("s_cbranch_scc1 L_end")
    A.I("s_load_dwordx16 s[16:31], s[0:1], 0")
    A.I("s_load_dwordx4 s[32:35], s[0:1], 64")
    A.I("v_lshrrev_b32 v3, 6, v0"); A.I("v_and_b32 v1, 63, v0"); A.I("v_lshlrev_b32 v2, 4, v1")
    A.I(f"v_readfirstlane_b32 s{S_W}, v3")
    A.I(f"v_lshlrev_b32 v{V_FL}, 2, v1"); A.I(f"v_lshlrev_b32 v{V_LN}, 7, v1")
    A.I(f"s_getreg_b32 s{S_XCC}, hwreg(HW_REG_XCC_ID, 0, 3)")
    A.I(f"s_and_b32 s{S_X}, s2, 7"); A.I(f"s_lshr_b32 s{S_R}, s2, 3")
    A.I(f"s_mov_b32 s{S_LB}, {LB(0):#x}"); A.I(f"s_mov_b32 s{S_L}, 0")
    A.I("s_waitcnt lgkmcnt(0)")
    for r, p, n in ((R_WQKV, P_WQKV, 512*1536*2), (R_AX, P_AX, 2048*512*2), (R_WS, P_WS, WS_USED), (R_DBG, P_DBG, 256), (R_WO, P_WO, 512*512*2),
                    (R_G, P_G, 512*1376*2), (R_U, P_U, 512*1376*2), (R_D, P_D, 1376*512*2), (R_OUT, P_OUT, 2048*512*2)):
        srd(A, r, p, n)

def lane_consts(A):
    t = 4
    d = V_T64
    A.I(f"v_lshrrev_b32 v{d}, 5, v1"); A.I(f"v_lshlrev_b32 v{d}, 8, v{d}")
    A.I(f"v_bfe_u32 v{t}, v1, 2, 2"); A.I(f"v_lshl_add_u32 v{d}, v{t}, 6, v{d}")
    A.I(f"v_bfe_u32 v{t}, v1, 4, 1"); A.I(f"v_lshl_add_u32 v{d}, v{t}, 5, v{d}")
    A.I(f"v_and_b32 v{t}, 3, v1"); A.I(f"v_lshl_add_u32 v{d}, v{t}, 3, v{d}")
    d = V_T128
    A.I(f"v_lshrrev_b32 v{d}, 5, v1"); A.I(f"v_lshlrev_b32 v{d}, 9, v{d}")
    A.I(f"v_bfe_u32 v{t}, v1, 2, 2"); A.I(f"v_lshl_add_u32 v{d}, v{t}, 7, v{d}")
    A.I(f"v_bfe_u32 v{t}, v1, 3, 1"); A.I(f"v_lshl_add_u32 v{d}, v{t}, 6, v{d}")
    A.I(f"v_bfe_u32 v{t}, v1, 4, 1"); A.I(f"v_lshl_add_u32 v{d}, v{t}, 5, v{d}")
    A.I(f"v_and_b32 v{t}, 3, v1"); A.I(f"v_lshl_add_u32 v{d}, v{t}, 3, v{d}")
    d = V_DR
    A.I(f"v_lshrrev_b32 v{d}, 3, v1"); A.I(f"v_lshlrev_b32 v{d}, 10, v{d}")
    A.I(f"v_bfe_u32 v{t}, v1, 4, 1"); A.I(f"v_lshlrev_b32 v{t}, 2, v{t}")
    A.I(f"v_and_b32 v{t+1}, 7, v1"); A.I(f"v_xor_b32 v{t}, v{t}, v{t+1}")
    A.I(f"v_lshl_add_u32 v{d}, v{t}, 4, v{d}")
    d = V_DG
    A.I(f"v_lshrrev_b32 v{d}, 2, v1"); A.I(f"v_mul_u32_u24 v{d}, 2752, v{d}")
    A.I(f"v_and_b32 v{t}, 3, v1"); A.I(f"v_xor_b32 v{t+1}, 2, v{t}")
    A.I(f"v_lshl_add_u32 v{V_DG2}, v{t+1}, 4, v{d}"); A.I(f"v_lshl_add_u32 v{d}, v{t}, 4, v{d}")
    d = V_KA
    A.I(f"v_and_b32 v{d}, 0x33, v1")
    A.I(f"v_bfe_u32 v{t}, v1, 2, 1"); A.I(f"v_lshl_or_b32 v{d}, v{t}, 3, v{d}")
    A.I(f"v_bfe_u32 v{t}, v1, 3, 1"); A.I(f"v_lshl_or_b32 v{d}, v{t}, 2, v{d}")
    A.I(f"v_lshlrev_b32 v{d}, 4, v{d}")
    d = V_VA
    A.I(f"v_and_b32 v{d}, 15, v1"); A.I(f"v_lshlrev_b32 v{d}, 4, v{d}")
    A.I(f"v_bfe_u32 v{t}, v1, 4, 1"); A.I(f"v_lshl_or_b32 v{d}, v{t}, 16, v{d}")
    A.I(f"v_bfe_u32 v{t}, v1, 5, 1"); A.I(f"v_lshl_or_b32 v{d}, v{t}, 8, v{d}")
    d = V_ROW
    A.I(f"v_and_b32 v{d}, 31, v1"); A.I(f"v_lshlrev_b32 v{d}, 10, v{d}"); A.I(f"v_lshrrev_b32 v{t}, 5, v1"); A.I(f"v_lshl_add_u32 v{d}, v{t}, 3, v{d}")

def qkv_out_addr(A, sO, sJ, sTT, sT):
    A.I(f"s_lshl_b32 s{sO}, s{sJ}, 17"); A.I(f"s_lshl_b32 s{sT}, s{sTT}, 10"); A.I(f"s_add_u32 s{sO}, s{sO}, s{sT}")
    A.I(f"s_add_u32 s{sO}, s{sO}, s{S_LB}")
    A.I(f"s_add_u32 s{sO+1}, s{sO}, 65536"); A.I(f"s_add_u32 s{sO+2}, s{sO}, {KF:#x}")
    A.I(f"s_add_u32 s{sO+3}, s{sO+1}, {KF:#x}"); A.I(f"s_add_u32 s{sO+4}, s{sO}, {VF:#x}")
def fin_list(acc, scale, out, stores):
    L = []
    for hh in range(2):
        L += [f"v_mul_f32 v{acc+i}, v{acc+i}, v{scale(i)}" for i in range(8*hh, 8*hh+8)]
        L += [f"v_cvt_pk_bf16_f32 v{out+i}, v{acc+2*i}, v{acc+2*i+1}" for i in range(4*hh, 4*hh+4)]
        L.append(("vm", stores[hh], "st"))
    return L

CODE_WINDOWS = 6
XST = 98304
def ph_qkv0(A):
    sI, sJ, sTT, sT, sO, sU, sWo, sM = 70, 71, 72, 73, 74, 79, 80, 81
    vTr0, vTr1, vXb, vXr, vTmp = 5, 6, 7, 8, 10
    vSum, vMean, vRstd, vMF, vOne = 16, 18, 19, 20, 9
    vW, vQ, vK, vV, vX = 24, 48, 64, 80, 96
    vOnes = 224
    vCS, vRT = vX, vX + 16
    A.I(f"s_cmp_lg_u32 s{S_W}, 0"); A.I("s_cbranch_scc1 q0_nz")
    A.I("v_mul_u32_u24 v4, 43, v1"); A.I("v_lshrrev_b32 v4, 8, v4")
    A.I("v_mul_u32_u24 v5, 6, v4"); A.I("v_sub_u32 v5, v1, v5")
    A.I(f"s_mov_b32 s70, {LSTR:#x}"); A.I("v_mul_lo_u32 v4, v4, s70"); A.I("v_lshl_add_u32 v4, v5, 10, v4")
    A.I("v_mov_b32 v5, 0")
    A.I("s_lshl_b32 s70, s2, 2"); A.I(f"s_add_u32 s70, s70, {FLG + LSTR:#x}")
    A.I("s_mov_b64 exec, 0xfff")
    A.I(f"buffer_store_dword v5, v4, {WSR}, s70 offen sc0 sc1")
    A.I("s_mov_b64 exec, -1")
    A.L("q0_nz")
    stamp(A, "q0_sld")
    if P['warm0']:
        A.I(f"s_cmp_lg_u32 s{S_W}, 0"); A.I("s_cbranch_scc1 q0_w1")
        A.I(f"s_lshl_b32 s{sT}, s{S_X}, 18"); A.I(f"s_lshl_b32 s{sO}, s{S_R}, 13"); A.I(f"s_add_u32 s{sT}, s{sT}, s{sO}")
        A.I(f"buffer_load_dword a64, v{V_LN}, {SR(R_AX)}, s{sT} offen")
        A.I("s_getpc_b64 s[12:13]")
        A.I(f"s_and_b32 s{sT}, s{S_R}, 7"); A.I(f"s_min_u32 s{sT}, s{sT}, {CODE_WINDOWS-1}"); A.I(f"s_lshl_b32 s{sT}, s{sT}, 13")
        A.I(f"v_add_u32 v4, s{sT}, v{V_LN}")
        A.I("global_load_dword a65, v4, s[12:13]")
        A.I("s_branch q0_w2")
        A.L("q0_w1")
        A.I(f"s_mul_i32 s{sT}, s{S_R}, 49152"); A.I(f"s_lshl_b32 s{sO}, s{S_W}, 14"); A.I(f"s_add_u32 s{sT}, s{sT}, s{sO}"); A.I(f"s_sub_u32 s{sT}, s{sT}, 16384")
        A.I(f"buffer_load_dword a64, v{V_LN}, {SR(R_WQKV)}, s{sT} offen"); A.I(f"s_add_u32 s{sT}, s{sT}, 8192")
        A.I(f"buffer_load_dword a65, v{V_LN}, {SR(R_WQKV)}, s{sT} offen")
        A.L("q0_w2")
    R = 12; sQ, sStrip, sJb = 82, 83, 91
    A.I(f"s_lshl_b32 s{sJb}, s{S_W}, 13"); A.I(f"s_add_u32 s{sJb}, s{sJb}, {XST}")
    def job_loads():
        R = 12
        sQ, sStrip = 82, 83
        A.I("s_cmp_ge_u32 s2, 172"); A.I("s_cselect_b32 s84, 1, 0"); A.I(f"s_lshr_b32 s85, s{S_W}, 1"); A.I("s_or_b32 s84, s84, s85")
        A.I("s_cmp_lg_u32 s84, 0"); A.I("s_cbranch_scc1 q0_nojob1")
        A.I(f"s_lshr_b32 s{sStrip}, s2, 1"); A.I(f"s_and_b32 s{sQ}, s2, 1"); A.I(f"s_lshl_b32 s{sQ}, s{sQ}, 1"); A.I(f"s_add_u32 s{sQ}, s{sQ}, s{S_W}")
        A.I(f"s_cmp_ge_u32 s{sStrip}, 43")
        A.I(f"s_cselect_b32 s{R}, s{P_U}, s{P_G}"); A.I(f"s_cselect_b32 s{R+1}, s{P_U+1}, s{P_G+1}"); A.I(f"s_cselect_b32 s85, 43, 0")
        A.I(f"s_and_b32 s{R+1}, s{R+1}, 0xffff"); A.I(f"s_mov_b32 s{R+2}, {512*1376*2:#x}"); A.I(f"s_mov_b32 s{R+3}, 0x20000")
        A.I(f"s_sub_u32 s{sStrip}, s{sStrip}, s85")
        A.I(f"s_mul_i32 s86, s{sQ}, {128*2752}"); A.I(f"s_lshl_b32 s87, s{sStrip}, 6"); A.I("s_add_u32 s86, s86, s87")
        for m in range(8):
            A.I(f"s_add_u32 m0, s{sJb}, {1024*m}"); A.nop(1)
            A.I(f"buffer_load_dwordx4 v{V_DG}, {SR(R)}, s86 offen lds")
            A.I(f"s_add_u32 s86, s86, {16*2752}")
        A.L("q0_nojob1")
        A.I("v_lshlrev_b32 v4, 20, v1")
        A.I(f"buffer_load_dword a128, v4, {WSR}, 0 offen")
    if INSTR and P.get('lat0'):
        A.I("s_waitcnt vmcnt(0)"); stamp(A, "q0_latall")
    coords_ij(A, sI, sJ)
    A.I(f"s_lshl_b32 s{sTT}, s{sI}, 2"); A.I(f"s_add_u32 s{sTT}, s{sTT}, s{S_W}")
    A.I(f"v_lshrrev_b32 v{V_DQ}, 2, v1"); A.I(f"v_mul_u32_u24 v{V_DQ}, 3072, v{V_DQ}")
    A.I(f"v_and_b32 v4, 3, v1"); A.I(f"v_lshl_add_u32 v{V_DQ}, v4, 4, v{V_DQ}")
    A.I(f"v_lshrrev_b32 v4, 4, v1"); A.I(f"v_and_b32 v{vXb}, 15, v1"); A.I(f"v_xor_b32 v{vXb}, v{vXb}, v4")
    A.I(f"v_lshlrev_b32 v{vXb}, 4, v{vXb}"); A.I(f"v_lshl_add_u32 v{vXb}, v4, 10, v{vXb}")
    A.I(f"s_lshl_b32 s{sU}, s{S_W}, 15"); A.I(f"s_add_u32 s{sU}, s{sU}, 32768")
    A.I(f"v_lshrrev_b32 v4, 5, v1"); A.I(f"v_and_b32 v{vXr}, 15, v1"); A.I(f"v_xor_b32 v{vXr}, v{vXr}, v4"); A.I(f"v_lshlrev_b32 v{vXr}, 4, v{vXr}")
    A.I(f"v_and_b32 v4, 31, v1"); A.I(f"v_lshl_add_u32 v{vXr}, v4, 8, v{vXr}"); A.I(f"v_add_u32 v{vXr}, s{sU}, v{vXr}")
    def xchunk(c):
        A.I(f"s_lshl_b32 s{sT}, s{sTT}, 15"); A.I(f"s_add_u32 s{sT}, s{sT}, {256*c}")
        for m in range(8):
            A.I(f"s_add_u32 m0, s{sU}, {8192*c + 1024*m}")
            A.I(f"v_xor_b32 v{vTmp+(m&1)}, {((4*m) & 15) << 4}, v{vXb}")
            A.VM(f"buffer_load_dwordx4 v{vTmp+(m&1)}, {SR(R_AX)}, s{sT} offen lds", f"xc{c}")
            A.I(f"s_add_u32 s{sT}, s{sT}, 4096")
    def xreads(c):
        A.wait_vm(f"xc{c}")
        for k in range(8):
            A.I(f"v_xor_b32 v{vTmp+(k&1)}, {k << 5}, v{vXr}")
            n = 8*c + k
            A.I(f"ds_read_b128 v[{vX+4*n}:{vX+4*n+3}], v{vTmp+(k&1)} offset:{8192*c}")
    def stats(c):
        A.I("s_waitcnt lgkmcnt(0)")
        for n in range(8*c, 8*c+8):
            for q in range(4):
                A.I(f"v_dot2c_f32_bf16 v{vSum}, v{vX+4*n+q}, v{vOne}")
                A.I(f"v_dot2c_f32_bf16 v{vSum+1}, v{vX+4*n+q}, v{vX+4*n+q}")
    W = qkv_w_feeder(A, [12288*g for g in range(8)], raw=True)
    xchunk(0); xchunk(1)
    lane_consts(A)
    A.I(f"v_lshrrev_b32 v4, 5, v1"); A.I(f"v_lshl_add_u32 v{vTr0}, v4, 8, v{V_T64}"); A.I(f"v_add_u32 v{vTr1}, 49152, v{vTr0}")
    A.I(f"v_mov_b32 v{vOne}, 0x3f803f80"); A.I(f"v_mov_b32 v{vSum}, 0"); A.I(f"v_mov_b32 v{vSum+1}, 0")
    for q in range(4): A.I(f"v_mov_b32 v{vOnes+q}, 0x3f803f80")
    for q in range(48): A.I(f"v_accvgpr_write_b32 a{q}, 0")
    xreads(0)
    stamp(A, "q0_x0")
    A.I(f"s_cmp_lg_u32 s{S_W}, 0"); A.I("s_cbranch_scc1 q0_na")
    A.I(f"s_lshl_b32 s{sT}, s{S_XCC}, 5"); A.I(f"v_mov_b32 v{V_RANK}, 1"); A.I("s_mov_b64 exec, 1")
    A.I(f"buffer_atomic_add v{V_RANK}, off, {SR(R_DBG)}, s{sT} sc0 sc1")
    A.I("s_mov_b64 exec, -1")
    A.L("q0_na")
    xchunk(2); stats(0)
    xreads(1); xchunk(3); stats(1)
    xreads(2); W.emit(6); stats(2)
    xreads(3); A.I("s_waitcnt lgkmcnt(0)"); A.I("s_barrier")
    stamp(A, "q0_x3")
    W.emit(9); stats(3);
    def reads(n):
        b = vTr0 if n < 16 else vTr1
        o = (n % 16) * 3072; p = vW + 12*(n & 1)
        return [(f"ds_read_b64_tr_b16 v[{p+4*q+2*hh}:{p+4*q+2*hh+1}], v{b} offset:{o+1024*q+256*hh}", f"k{n}q{q}") for q in range(3) for hh in range(2)]
    SY = {0: 1, 8: 3, 16: 5, 24: 7}
    A.wait_vm("wq1"); A.I("s_barrier")
    stamp(A, "q0_w0")
    for r in reads(0): A.LD(*r)
    for n in range(32):
        if n + 1 in SY: A.wait_vm(f"wq{SY[n+1]}"); A.I("s_barrier")
        nx = reads(n+1) if n + 1 < 32 else []
        p = vW + 12*(n & 1); x = v(vX+4*n, 4)
        for q in range(3):
            A.wait_lg(f"k{n}q{q}")
            c = "0" if n == 0 else None
            if q < 2: mfma(A, v((vQ, vK)[q],16), v(p+4*q,4), x, c)
            else: mfma(A, v(vV,16), x, v(p+8,4), c)
            for r in nx[2*q:2*q+2]: A.LD(*r)
            if q == 0 and len(W): W.emit(1)
        if n == 24: job_loads()
        lab = A.label("q0cs")
        A.I(f"s_cmp_lg_u32 s{S_W}, {n & 3}"); A.I(f"s_cbranch_scc1 {lab}")
        for q in range(3): mfma(A, a(16*q,16), v(vOnes,4), v(p+4*q,4))
        A.L(lab)
    stamp(A, "q0_loop")
    SCR = XST + 3*16384
    for i in stats_fin_list(vSum, vMean, vRstd, vMF, vTmp): A.I(i)
    A.I(f"s_lshr_b32 s{sT}, s{S_W}, 1"); A.I(f"s_lshl_b32 s{sT}, s{sT}, 9"); A.I(f"s_and_b32 s{sO}, s{S_W}, 1"); A.I(f"s_lshl_b32 s{sO}, s{sO}, 3")
    A.I(f"s_add_u32 s88, s{sT}, s{sO}")
    A.I(f"s_add_u32 s{sT}, s88, {SCR}")
    A.I(f"v_and_b32 v{vTmp+4}, 0x1ff, v2"); A.I(f"v_add_u32 v{vTmp+4}, s{sT}, v{vTmp+4}")
    def split(src, d):
        A.I(f"v_cvt_pk_bf16_f32 v{d}, v{src}, v{src}"); A.I(f"v_and_b32 v{d+1}, 0xffff0000, v{d}")
        A.I(f"v_sub_f32 v{d+1}, v{src}, v{d+1}"); A.I(f"v_cvt_pk_bf16_f32 v{d+1}, v{d+1}, v{d+1}")
    for q in range(3):
        A.I(f"v_accvgpr_read_b32 v{vTmp}, a{16*q}")
        split(vTmp, vW+2*q)
        A.I(f"ds_write_b64 v{vTmp+4}, v[{vW+2*q}:{vW+2*q+1}] offset:{1024*q}")
    for i in rstd_tr_list(SCR + 4096, vRstd, vRT, vTmp, sT):
        A.I(i[1] if isinstance(i, tuple) else i)
    A.I("s_waitcnt lgkmcnt(0)"); A.I("s_barrier")
    A.I(f"v_add_u32 v{vTmp}, {SCR}, v2")
    for q in range(3): A.I(f"ds_read_b128 v[{vCS+4*q}:{vCS+4*q+3}], v{vTmp} offset:{1024*q}")
    qkv_out_addr(A, sO, sJ, sTT, sT)
    A.I(f"v_mul_f32 v{vTmp+1}, {f32bits(0.25*LOG2E):#x}, v{vRstd}")
    A.I("s_waitcnt lgkmcnt(0)")
    mfma(A, v(vK,16), v(vCS+4,4), v(vMF,4)); mfma(A, v(vV,16), v(vMF,4), v(vCS+8,4)); mfma(A, v(vQ,16), v(vCS,4), v(vMF,4))
    A.I(f"s_or_b32 s{sT}, s{sI}, s{S_W}"); A.I(f"s_cmp_lg_u32 s{sT}, 0"); A.I("s_cbranch_scc1 q0_nocs")
    A.I(f"s_lshl_b32 s{sT}, s{sJ}, 10"); A.I(f"s_add_u32 s{sT}, s{sT}, {CSQ:#x}")
    for q in range(3):
        A.I(f"buffer_store_dwordx4 v[{vCS+4*q}:{vCS+4*q+3}], v2, {WSR}, s{sT} offen sc1"); A.I(f"s_add_u32 s{sT}, s{sT}, 16384")
    A.L("q0_nocs")
    A.nop(8)
    L = fin_list(vK, lambda i: vRstd, vW, [f"buffer_store_dwordx4 v[{vW+4*h}:{vW+4*h+3}], v{V_KA}, {WSR}, s{sO+2+h} offen sc1" for h in range(2)])
    L += fin_list(vV, lambda i: vRT+i, vW+8, [f"buffer_store_dwordx4 v[{vW+8+4*h}:{vW+8+4*h+3}], v{V_VA}, {WSR}, s{sO+4} offen offset:{512*h} sc1" for h in range(2)])
    L += fin_list(vQ, lambda i: vTmp+1, vW+16, [f"buffer_store_dwordx4 v[{vW+16+4*h}:{vW+16+4*h+3}], v2, {WSR}, s{sO+h} offen sc1" for h in range(2)])
    ilist(A, L).flush()
    A.I("s_cmp_lg_u32 s84, 0"); A.I("s_cbranch_scc1 q0_nojob2")
    A.I("s_waitcnt vmcnt(6)")
    A.I(f"v_add_u32 v{vTmp}, s{sJb}, v{V_T64}")
    for m in range(8):
        A.I(f"ds_read_b64_tr_b16 v[{vX+4*m}:{vX+4*m+1}], v{vTmp} offset:{1024*m}")
        A.I(f"ds_read_b64_tr_b16 v[{vX+4*m+2}:{vX+4*m+3}], v{vTmp} offset:{1024*m+512}")
    A.I("s_waitcnt lgkmcnt(0)")
    for m in range(8): mfma(A, v(vQ,16), v(vOnes,4), v(vX+4*m,4), "0" if m == 0 else None)
    A.I(f"s_lshl_b32 s86, s{sStrip}, 11"); A.I(f"s_add_u32 s86, s86, {CSG:#x}")
    A.I(f"s_lshr_b32 s87, s{sQ}, 1"); A.I("s_lshl_b32 s87, s87, 9"); A.I("s_add_u32 s86, s86, s87")
    A.I(f"s_and_b32 s87, s{sQ}, 1"); A.I("s_lshl_b32 s87, s87, 3"); A.I("s_add_u32 s86, s86, s87")
    A.I("s_cmp_lg_u32 s85, 0"); A.I("s_cselect_b32 s87, 256, 0"); A.I("s_add_u32 s86, s86, s87")
    A.I(f"v_bfe_u32 v{vTmp}, v1, 4, 1"); A.I(f"v_lshlrev_b32 v{vTmp}, 10, v{vTmp}"); A.I(f"v_and_b32 v{vTmp+1}, 15, v1"); A.I(f"v_lshl_add_u32 v{vTmp}, v{vTmp+1}, 4, v{vTmp}")
    A.nop(4)
    split(vQ, vK)
    A.I("s_mov_b32 exec_hi, 0")
    A.I(f"buffer_store_dwordx2 v[{vK}:{vK+1}], v{vTmp}, {WSR}, s86 offen sc1")
    A.I("s_mov_b32 exec_hi, -1")
    A.L("q0_nojob2")
    stamp(A, "q0_stored")
    A.I("s_waitcnt vmcnt(0)"); A.vm = []
    A.I(f"s_cmp_lg_u32 s{S_W}, 0"); A.I("s_cbranch_scc1 q0_nr")
    A.I(f"v_mov_b32 v{vTmp}, {QK_SCR}"); A.I("s_mov_b64 exec, 1"); A.I(f"ds_write_b32 v{vTmp}, v{V_RANK}"); A.I("s_mov_b64 exec, -1")
    A.I("s_waitcnt lgkmcnt(0)")
    A.L("q0_nr")
    A.I("s_barrier")
    A.I(f"s_lshl_b32 s{sT}, s{sJ}, 4"); A.I(f"s_add_u32 s{sT}, s{sT}, s{sI}")
    A.I(f"v_mov_b32 v{vTmp}, {QK_SCR}"); A.I(f"ds_read_b32 v{V_RANK}, v{vTmp}")
    A.I(f"s_mov_b32 s{S_SPIN}, 0")
    A.I(f"v_lshlrev_b32 v4, 5, v1")
    A.I("s_mov_b64 exec, 0xff")
    A.L("q0_pc")
    A.I(f"buffer_load_dword v3, v4, {SR(R_DBG)}, 0 offen sc0 sc1")
    A.I(f"s_add_u32 s{S_SPIN}, s{S_SPIN}, 1"); A.I(f"s_cmp_gt_u32 s{S_SPIN}, 0x80000"); A.I("s_cbranch_scc1 L_abort")
    A.I("s_waitcnt vmcnt(0) lgkmcnt(0)")
    A.I("v_cmp_eq_u32 vcc, 32, v3")
    A.I("v_readlane_b32 s84, v3, 0")
    for l in range(1, 8):
        A.I(f"v_readlane_b32 s85, v3, {l}"); A.nop(1); A.I("s_add_u32 s84, s84, s85")
    A.I("s_cmp_lg_u32 s84, 256"); A.I("s_cbranch_scc1 q0_pc")
    A.I("s_mov_b64 exec, -1")
    post_store(A, F_QKV, sT, " sc0 sc1")
    stamp(A, "q0_posted")
    RFV = 160
    R = 12
    A.I(f"s_lshl_b32 s70, s2, 2"); A.I(f"s_add_u32 s70, s70, s{S_W}")
    A.I(f"s_bitcmp1_b32 s{S_W}, 0")
    A.I(f"s_cselect_b32 s{R}, s{P_U}, s{P_G}"); A.I(f"s_cselect_b32 s{R+1}, s{P_U+1}, s{P_G+1}"); A.I("s_cselect_b32 s71, 32, 0")
    A.I(f"s_and_b32 s{R+1}, s{R+1}, 0xffff"); A.I(f"s_mov_b32 s{R+2}, {512*1376*2:#x}"); A.I(f"s_mov_b32 s{R+3}, 0x20000")
    A.I(f"v_xor_b32 v4, s71, v{V_DG}")
    for k in range(3):
        A.I(f"s_add_u32 s72, s70, {1024*k}")
        A.I("s_lshr_b32 s73, s72, 6"); A.I("s_lshl_b32 s73, s73, 6")
        A.I("s_bfe_u32 s74, s72, 0x50001"); A.I(f"s_mul_i32 s74, s74, {16*2752}"); A.I("s_add_u32 s73, s73, s74")
        A.I(f"s_lshl_b32 s{86+k}, s72, 10"); A.I(f"s_add_u32 s{86+k}, s{86+k}, {WFG:#x}")
        if k == 2:
            A.I("s_cmp_ge_u32 s72, 2752"); A.I("s_cselect_b32 s73, 0xf0000000, s73"); A.I(f"s_cselect_b32 s{86+k}, 0xf0000000, s{86+k}")
        A.I(f"buffer_load_dwordx4 v[{RFV+4*k}:{RFV+4*k+3}], v4, {SR(R)}, s73 offen")
    for k in range(2):
        if k == 0: A.I("s_mov_b32 s72, s70")
        else: A.I("s_add_u32 s72, s70, 512")
        A.I("s_mul_i32 s73, s72, 683"); A.I("s_lshr_b32 s73, s73, 16")
        A.I("s_mul_i32 s74, s73, 96"); A.I("s_sub_u32 s74, s72, s74")
        A.I("s_mul_i32 s75, s74, 171"); A.I("s_lshr_b32 s75, s75, 9")
        A.I("s_mul_i32 s76, s75, 3"); A.I("s_sub_u32 s74, s74, s76")
        A.I("s_lshl_b32 s73, s73, 6"); A.I("s_lshl_b32 s74, s74, 10"); A.I("s_add_u32 s73, s73, s74")
        A.I("s_mul_i32 s75, s75, 49152"); A.I("s_add_u32 s73, s73, s75")
        A.I(f"s_lshl_b32 s{89+k}, s72, 10")
        if k == 1:
            A.I("s_cmp_lt_u32 s70, 512"); A.I("s_cselect_b32 s73, 0xf0000000, s73"); A.I(f"s_cselect_b32 s{89+k}, 0xf0000000, s{89+k}")
        A.I(f"buffer_load_dwordx4 v[{RFV+12+4*k}:{RFV+12+4*k+3}], v{V_DQ}, {SR(R_WQKV)}, s73 offen")
    A.I("s_cmp_eq_u32 vcc_lo, 0xff"); A.I("s_cbranch_scc0 G_att")
    if P['force_g']: A.I("s_branch G_att")
    A.I(f"v_readfirstlane_b32 s{S_R}, v{V_RANK}"); A.I(f"s_mov_b32 s{S_X}, s{S_XCC}")
    A.nop(4)
    A.I("s_branch L_att")

def x_feeder(A, sXo, n, tag="x"):
    X = Feeder(A)
    for i in range(n):
        def f(i=i):
            A.VM(f"buffer_load_dwordx4 a[{4*i}:{4*i+3}], v2, {WSR}, s{sXo} offen offset:{1024*(i%4)}{LD}", f"x{i}")
            if i % 4 == 3: A.I(f"s_add_u32 s{sXo}, s{sXo}, 4096")
        X.add(f)
    return X

def ph_qkv(A):
    sI, sJ, sTT, sXo, sT, sO = 70, 71, 72, 73, 74, 75
    vB, vST, vCS, vMF, vMean, vRstd, vTmp = 4, 8, 24, 36, 40, 41, 42
    vW, vQ, vK, vV, vRT, vO = 48, 72, 88, 104, 120, 136
    coords_ij(A, sI, sJ)
    A.I(f"s_lshl_b32 s{sTT}, s{sI}, 2"); A.I(f"s_add_u32 s{sTT}, s{sTT}, s{S_W}")
    A.I(f"s_lshl_b32 s{sXo}, s{sTT}, 15"); A.I(f"s_add_u32 s{sXo}, s{sXo}, s{S_LB}"); A.I(f"s_add_u32 s{sXo}, s{sXo}, {(XF_ - LSTR) & M32:#x}")
    mk_windows(A, vB, V_T64)
    A.I(f"s_lshl_b32 s{sT}, s{sJ}, 10"); A.I(f"s_add_u32 s{sT}, s{sT}, {CSQ:#x}")
    for q in range(3):
        A.VM(f"buffer_load_dwordx4 v[{vCS+4*q}:{vCS+4*q+3}], v2, {WSR}, s{sT} offen{LD}", "cs"); A.I(f"s_add_u32 s{sT}, s{sT}, 16384")
    qkv_out_addr(A, sO, sJ, sTT, sT)
    A.I(f"s_lshl_b32 s{sT}, s{sI}, 4")
    poll(A, F_DN - LSTR, sT, 16)
    stamp(A, "qkv_polled")
    A.I("s_barrier")
    A.I(f"s_lshl_b32 s{sT}, s{sTT}, 12"); A.I(f"s_add_u32 s{sT}, s{sT}, s{S_LB}"); A.I(f"s_add_u32 s{sT}, s{sT}, {(STF - LSTR) & M32:#x}")
    X = x_feeder(A, sXo, 32)
    X.emit(6); stats_load(A, vST, sT); X.emit(2)
    def rd(n, q, p):
        k, o = win(QK_GRP[n//4] + (n % 4)*3072)
        return [(f"ds_read_b64_tr_b16 v[{p+2*hh}:{p+2*hh+1}], v{vB+k} offset:{o+1024*q+512*hh}", f"k{n}q{q}") for hh in range(2)]
    seq = [(n, q) for n in range(32) for q in (1, 2)] + [(n, 0) for n in range(32)]
    DEP = 4
    for j in range(DEP - 1):
        for r in rd(*seq[j], vW + 4*(j % DEP)): A.LD(*r)
    V = ilist(A, stats_reduce_list(vST) + stats_fin_list(vST, vMean, vRstd, vMF, vTmp) + rstd_tr_list(QK_SCR, vRstd, vRT, vTmp, sT)
              + [f"v_mul_f32 v{vTmp}, {f32bits(0.25*LOG2E):#x}, v{vRstd}"])
    E = ilist(A, fin_list(vK, lambda i: vRstd, vO, [f"buffer_store_dwordx4 v[{vO+4*h}:{vO+4*h+3}], v{V_KA}, {WSR}, s{sO+2+h} offen sc1" for h in range(2)])
              + fin_list(vV, lambda i: vRT+i, vO+8, [f"buffer_store_dwordx4 v[{vO+8+4*h}:{vO+8+4*h+3}], v{V_VA}, {WSR}, s{sO+4} offen offset:{512*h} sc1" for h in range(2)]))
    for j, (n, q) in enumerate(seq):
        p = vW + 4*(j % DEP); x = a(4*n, 4)
        if j < 64 and q == 1:
            A.wait_vm(f"x{n}")
            if n == 0: stamp(A, "qkv_x0")
        if j == 64:
            mfma(A, v(vK,16), v(vCS+4,4), v(vMF,4)); mfma(A, v(vV,16), v(vMF,4), v(vCS+8,4))
        A.wait_lg(f"k{n}q{q}")
        c = "0" if n == 0 else None
        if q == 0: mfma(A, v(vQ,16), v(p,4), x, c)
        elif q == 1: mfma(A, v(vK,16), v(p,4), x, c)
        else: mfma(A, v(vV,16), x, v(p,4), c)
        if j + DEP - 1 < len(seq):
            for r in rd(*seq[j+DEP-1], vW + 4*((j+DEP-1) % DEP)): A.LD(*r)
        if q == 1: X.emit(1)
        if 16 <= j < 64: V.emit(2)
        if j >= 68: E.emit(2)
    assert not len(V) and not len(X) and not len(E), (len(V), len(E))
    mfma(A, v(vQ,16), v(vCS,4), v(vMF,4))
    stamp(A, "qkv_loop")
    A.I(f"s_lshl_b32 s{sT}, s{sJ}, 4"); A.I(f"s_add_u32 s{sT}, s{sT}, s{sI}")
    A.nop(10)
    ilist(A, fin_list(vQ, lambda i: vTmp, vO+16, [f"buffer_store_dwordx4 v[{vO+16+4*h}:{vO+16+4*h+3}], v2, {WSR}, s{sO+h} offen{STL()}" for h in range(2)])).flush()
    stamp(A, "qkv_stored")
    post_flag(A, F_QKV, sT, " sc0 sc1")
    stamp(A, "qkv_posted")

TB = 2064
def ph_attn(A, pre, Wgu):
    sH, sQB, sT, sK, sM, sIt, sEnd, sPh, sRot, sO, sSy = 70, 71, 72, 73, 74, 75, 76, 77, 78, 79, 82
    sWa = 83
    QA, QB_, idx, aK, aVa, aVb = 4, 8, 36, 37, 38, 39
    Kr = [12, 16]; VAr = [20, 28]; VBr = [24, 32]
    SA, SB, OA, OB, CA, CB = 40, 56, 72, 88, 104, 120
    tmp = 136
    bK, bVa, bVb = tmp+8, tmp+9, tmp+10
    A.L(pre + "_att")
    A.I(f"s_mov_b32 s{sH}, s{S_R}"); A.I(f"s_mov_b32 s{sQB}, s{S_X}")
    for i in range(4): A.I(f"v_mov_b32 v{tmp+i}, 0x3f803f80")
    A.I(f"v_mul_u32_u24 v{tmp+4}, {TB}, v1")
    A.I(f"ds_write_b128 v{tmp+4}, v[{tmp}:{tmp+3}] offset:2048")
    A.I(f"v_mov_b32 v{idx}, 0xdddddddd"); A.I(f"v_mov_b32 v{bK}, v2")
    A.I(f"v_and_b32 v{bVa}, 0xffff, v{V_VA}"); A.I(f"v_add_u32 v{bVa}, 1024, v{bVa}"); A.I(f"v_add_u32 v{bVb}, 512, v{bVa}")
    A.I(f"v_and_b32 v{tmp+5}, 16, v1"); A.I(f"v_cmp_ne_u32 vcc, 0, v{tmp+5}"); A.I(f"v_mov_b32 v{tmp+6}, 2048")
    A.nop(1)
    A.I(f"v_cndmask_b32 v{bVa}, v{bVa}, v{tmp+6}, vcc"); A.I(f"v_cndmask_b32 v{bVb}, v{bVb}, v{tmp+6}, vcc")
    A.I(f"s_lshl_b32 s{sK}, s{sH}, 16"); A.I(f"s_add_u32 s{sK}, s{sK}, s{S_LB}")
    A.I(f"s_lshl_b32 s{sO}, s{sQB}, 13"); A.I(f"s_add_u32 s{sO}, s{sO}, s{sK}")
    A.I(f"s_lshl_b32 s{sM}, s{S_W}, 11"); A.I(f"s_add_u32 s{sO}, s{sO}, s{sM}")
    A.I(f"s_add_u32 s{sK}, s{sK}, {KF:#x}")
    A.I(f"s_lshl_b32 s{sRot}, s{sQB}, 3"); A.I(f"s_add_u32 s{sRot}, s{sRot}, s{S_W}")
    A.I(f"s_mul_i32 s{sM}, s{S_W}, {TB}")
    A.I(f"s_mul_i32 s{sWa}, s{S_R}, 44032"); A.I(f"s_mul_i32 s{sT}, s{S_W}, 11264"); A.I(f"s_add_u32 s{sWa}, s{sWa}, s{sT}")
    def init():
        A.I(f"v_mov_b32 v{aK}, v{bK}"); A.I(f"v_mov_b32 v{aVa}, v{bVa}"); A.I(f"v_mov_b32 v{aVb}, v{bVb}")
        for i in range(32): A.I(f"v_mov_b32 v{OA+i}, 0")
        for i in range(8): A.I(f"v_mov_b32 v{SB+8+i}, 0")
        for i in range(4): A.I(f"v_mov_b32 v{VBr[1]+i}, 0")
    init()
    A.I(f"s_lshr_b32 s{sT}, s{sH}, 1"); A.I(f"s_lshl_b32 s{sT}, s{sT}, 4")
    A.I(f"s_lshl_b32 s{sSy}, s{sT}, 2"); A.I(f"s_add_u32 s{sSy}, s{sSy}, s{S_LB}"); A.I(f"s_add_u32 s{sSy}, s{sSy}, {F_QKV:#x}")
    A.I(f"s_lshl_b32 s{sIt}, s{S_X}, 1"); A.I(f"s_add_u32 s{sT}, s{sT}, s{sIt}")
    A.I(f"v_and_b32 v{CB}, 60, v{V_FL}")
    A.I("s_waitcnt lgkmcnt(0)")
    poll(A, F_QKV, sT, 2)
    stamp(A, "att_polled")
    A.VM(f"buffer_load_dwordx4 v[{QA}:{QA+3}], v2, {WSR}, s{sO} offen{LD}", "q")
    def kv_round(tag):
        def fk():
            A.I(f"s_and_b32 s{sT}, s{sRot}, 63"); A.I(f"s_lshl_b32 s{sT}, s{sT}, 10")
            A.I(f"s_mov_b32 m0, s{sM}"); A.I(f"s_add_u32 s{sT}, s{sT}, s{sK}")
            A.VM(f"buffer_load_dwordx4 v2, {WSR}, s{sT} offen{LD} lds", tag)
            A.I(f"s_add_u32 s{sRot}, s{sRot}, 4")
        def fv():
            A.I(f"s_add_u32 m0, s{sM}, 1024"); A.I(f"s_add_u32 s{sT}, s{sT}, {VF-KF:#x}")
            A.VM(f"buffer_load_dwordx4 v2, {WSR}, s{sT} offen{LD} lds", tag)
            A.I(f"s_add_u32 s{sM}, s{sM}, {4*TB}")
        return [fk, fv]
    def feed(fs):
        F = Feeder(A)
        for f in fs: F.add(f)
        return F
    feed(kv_round("r0")).flush()
    A.VM(f"buffer_load_dwordx4 v[{QB_}:{QB_+3}], v2, {WSR}, s{sO} offen offset:1024{LD}", "r0")
    feed(kv_round("r1")).flush()
    A.VM(f"buffer_load_dword v{CA}, v{CB}, {WSR}, s{sSy} offen sc0 sc1", "pf")
    loopa, loopb, back, done = pre + "_aloopa", pre + "_aloopb", pre + "_aback", pre + "_adone"
    def first():
        A.I(f"ds_read_b128 v[{Kr[0]}:{Kr[0]+3}], v{aK}"); A.I(f"ds_read_b128 v[{VAr[0]}:{VAr[0]+3}], v{aVa}"); A.I(f"ds_read_b128 v[{VBr[0]}:{VBr[0]+3}], v{aVb}")
        A.I("s_waitcnt lgkmcnt(0)")
        mfma(A, v(SA,16), v(Kr[0],4), v(QA,4), "0")
        A.nop(12)
    U = 4
    def ex(S, i): A.I(f"v_exp_f32 v{S+i}, v{S+i}")
    def smf(O, Vr, Pp): A.I(f"v_smfmac_f32_32x32x32_bf16 v[{O}:{O+15}], v[{Vr}:{Vr+3}], v[{Pp}:{Pp+7}], v{idx}")
    def body(F, end, slots=(0, 1, 2), hook=None):
        def fe(k):
            if F and k in slots: F.emit(1)
        for u in range(U):
            p = u & 1; q = p ^ 1; last = (u == U-1)
            if hook: hook(u)
            ex(SA,0); ex(SA,1)
            smf(OB, VBr[q], SB+8)
            A.I(f"ds_read_b128 v[{Kr[q]}:{Kr[q]+3}], v{aK} offset:{TB*(u+1)}")
            ex(SA,2); ex(SA,3); ex(SA,4)
            mfma(A, v(SB,16), v(Kr[p],4), v(QB_,4), "0")
            A.I(f"ds_read_b128 v[{VAr[q]}:{VAr[q]+3}], v{aVa} offset:{TB*(u+1)}")
            for i in range(5, 10): ex(SA, i)
            smf(OA, VAr[p], SA)
            A.I(f"ds_read_b128 v[{VBr[q]}:{VBr[q]+3}], v{aVb} offset:{TB*(u+1)}")
            for i in range(10, 16): ex(SA, i)
            ex(SB,0); ex(SB,1)
            smf(OA, VBr[p], SA+8)
            fe(0)
            A.I("s_waitcnt lgkmcnt(0)")
            ex(SB,2); ex(SB,3); ex(SB,4)
            mfma(A, v(SA,16), v(Kr[q],4), v(QA,4), "0")
            fe(1)
            for i in range(5, 10): ex(SB, i)
            smf(OB, VAr[p], SB)
            fe(2)
            if last:
                if end: A.I(f"s_add_u32 s{sIt}, s{sIt}, 1"); A.I(f"s_cmp_lt_u32 s{sIt}, {end}")
                A.I(f"v_add_u32 v{aK}, {TB*U}, v{aK}"); A.I(f"v_add_u32 v{aVa}, {TB*U}, v{aVa}"); A.I(f"v_add_u32 v{aVb}, {TB*U}, v{aVb}")
            for i in range(10, 16): ex(SB, i)
        assert not F or not len(F)
    A.wait_vm("r0"); A.I("s_barrier")
    stamp(A, "att_first")
    first()
    def h0(u):
        if u == 1:
            lab, lab2 = A.label("kvpoll"), A.label("kvok")
            A.I(f"s_mov_b32 s{S_SPIN}, 0")
            A.L(lab)
            A.I("s_waitcnt vmcnt(0)"); A.vm = []
            A.I(f"v_cmp_ne_u32 vcc, 1, v{CA}")
            A.I(f"s_add_u32 s{S_SPIN}, s{S_SPIN}, 1"); A.I(f"s_cmp_gt_u32 s{S_SPIN}, 0x80000"); A.I("s_cbranch_scc1 L_abort")
            A.nop(2)
            A.I(f"s_cbranch_vccz {lab2}")
            A.I(f"buffer_load_dword v{CA}, v{CB}, {WSR}, s{sSy} offen sc0 sc1")
            A.I(f"s_branch {lab}")
            A.L(lab2)
            A.I("s_barrier")
            stamp(A, "att_all")
            lab = A.label("norf")
            A.I(f"s_cmp_lg_u32 s{S_L}, 0"); A.I(f"s_cbranch_scc1 {lab}")
            for k in range(5): A.I(f"buffer_store_dwordx4 v[{160+4*k}:{163+4*k}], v2, {WSR}, s{86+k} offen sc1")
            A.L(lab)
    F0 = feed([lambda: None, lambda: None] + kv_round("r2") + kv_round("r3") + [lambda: None, lambda: None])
    body(F0, None, slots=(1, 2), hook=h0)
    def h1(u):
        if u == 3: A.wait_vm("r3"); A.I("s_barrier")
    body(feed(kv_round("r4") + kv_round("r5")), None, slots=(1,), hook=h1)
    post_store(A, F_RF, 2, " sc0 sc1")
    A.I(f"s_mov_b32 s{sIt}, 2")
    A.I(".p2align 6")
    A.L(loopa)
    A.I("s_waitcnt vmcnt(4)"); A.I("s_barrier")
    body(feed(kv_round("rx") + kv_round("rx")), 7, slots=(1,))
    A.I(f"s_cbranch_scc1 {loopa}")
    A.I("s_waitcnt vmcnt(4)"); A.I("s_barrier")
    A.vm = []
    lab = A.label("nores")
    A.I(f"s_cmp_lg_u32 s{S_L}, 0"); A.I(f"s_cbranch_scc1 {lab}")
    coords_tc(A, sT, sO)
    A.I(f"s_lshl_b32 s{sT}, s{sT}, 1"); A.I(f"s_and_b32 s{sM}, s{S_W}, 1"); A.I(f"s_add_u32 s{sT}, s{sT}, s{sM}"); A.I(f"s_lshl_b32 s{sT}, s{sT}, 15")
    A.I(f"s_lshl_b32 s{sO}, s{sO}, 1"); A.I(f"s_lshr_b32 s{sM}, s{S_W}, 1"); A.I(f"s_add_u32 s{sO}, s{sO}, s{sM}"); A.I(f"s_lshl_b32 s{sO}, s{sO}, 6")
    A.I(f"s_add_u32 s{sT}, s{sT}, s{sO}")
    for i in range(4): A.I(f"buffer_load_dwordx2 v[{V_RES+2*i}:{V_RES+1+2*i}], v{V_ROW}, {SR(R_AX)}, s{sT} offen offset:{16*i}")
    A.L(lab)
    def touch(R, q, so, off):
        return lambda: A.I(f"buffer_load_dword a{q}, v{V_LN}, {SR(R)}, s{so} offen offset:{off}")
    T = [touch(R_D, 4, sWa, 0), touch(R_D, 5, sWa, 3072)] if P['warm_dn'] else []
    A.I(f"s_mov_b32 s{sO}, {F_RF + LSTR:#x}")
    body(feed(T + [lambda: A.I(f"buffer_load_dwordx4 v[{CA}:{CA+3}], v2, {WSR}, s{sO} offen sc0 sc1")]), None, slots=(1,))
    lab, lab2 = A.label("rfpoll"), A.label("rfok")
    A.I(f"s_mov_b32 s{S_SPIN}, 0")
    A.L(lab)
    A.I("s_waitcnt vmcnt(0)")
    A.I(f"v_and_b32 v{CA}, v{CA}, v{CA+1}"); A.I(f"v_and_b32 v{CA+2}, v{CA+2}, v{CA+3}"); A.I(f"v_and_b32 v{CA}, v{CA}, v{CA+2}")
    A.I(f"v_cmp_ne_u32 vcc, 1, v{CA}")
    A.I(f"s_add_u32 s{S_SPIN}, s{S_SPIN}, 1"); A.I(f"s_cmp_gt_u32 s{S_SPIN}, 0x80000"); A.I("s_cbranch_scc1 L_abort")
    A.nop(2)
    A.I(f"s_cbranch_vccz {lab2}")
    A.I(f"buffer_load_dwordx4 v[{CA}:{CA+3}], v2, {WSR}, s{sO} offen sc0 sc1")
    A.I(f"s_branch {lab}")
    A.L(lab2)
    A.I(f"s_lshl_b32 s{sWa}, s{sWa}, 1"); A.I(f"s_add_u32 s{sWa}, s{sWa}, {WFG:#x}"); A.I(f"s_add_u32 s{sO}, s{sWa}, 8192"); A.I(f"s_add_u32 s{sM}, s{sWa}, 14336")
    T = [touch(R_WS, 0, sWa, 0), touch(R_WS, 1, sO, 0), touch(R_WS, 2, sM, 0)] if P['warm_att'] else []
    body(feed(T), None, slots=(1,))
    A.I(f"s_mov_b32 s{sIt}, 9")
    A.I(".p2align 6")
    A.L(loopb)
    body(None, 12)
    A.I(f"s_cbranch_scc1 {loopb}")
    A.I(f"s_waitcnt vmcnt(0)"); A.I("s_barrier")
    Wwo = res_w_feeder(A, 'wo')
    F = Feeder(A)
    for _ in range(16): F.add(lambda: Wwo.emit(1))
    for _ in range(10): F.add(lambda: Wgu.emit(1))
    for it in range(4):
        G = Feeder(A); G.q = F.q[:8]; F.q = F.q[8:]
        body(G, None, slots=(1, 2))
    A.nop(2)
    smf(OB, VBr[(U-1)&1], SB+8)
    stamp(A, "att_loop")
    sO2 = sIt
    A.I(f"s_lshl_b32 s{sT}, s{sQB}, 18"); A.I(f"s_lshl_b32 s{sO2}, s{S_W}, 16"); A.I(f"s_add_u32 s{sT}, s{sT}, s{sO2}")
    A.I(f"s_lshl_b32 s{sO2}, s{sH}, 10"); A.I(f"s_add_u32 s{sT}, s{sT}, s{sO2}")
    A.I(f"s_add_u32 s{sT}, s{sT}, s{S_LB}"); A.I(f"s_add_u32 s{sT}, s{sT}, {OF:#x}"); A.I(f"s_add_u32 s{sO2}, s{sT}, 32768")
    A.I(f"s_mov_b32 s{sEnd}, {f32bits(2.0**-24):#x}"); A.I(f"s_mov_b32 s{sPh}, {f32bits(2.0**64):#x}")
    A.nop(4)
    fin, slow = pre + "_afin", pre + "_aslow"
    A.I(f"v_cmp_le_f32 s[12:13], s{sEnd}, v{OA+8}"); A.I(f"v_cmp_ge_f32 s[14:15], s{sPh}, v{OA+8}")
    A.I(f"v_cmp_le_f32 s[94:95], s{sEnd}, v{OB+8}"); A.I(f"v_cmp_ge_f32 vcc, s{sPh}, v{OB+8}")
    A.I(f"v_rcp_f32 v{tmp}, v{OA+8}"); A.I(f"v_rcp_f32 v{tmp+1}, v{OB+8}")
    A.I("s_and_b64 s[12:13], s[12:13], s[14:15]"); A.I("s_and_b64 s[94:95], s[94:95], vcc"); A.I("s_and_b64 s[12:13], s[12:13], s[94:95]")
    A.I("s_cmp_eq_u64 s[12:13], exec"); A.I(f"s_cbranch_scc0 {slow}")
    A.L(fin)
    for X, (O, so) in enumerate(((OA, sT), (OB, sO2))):
        for i in range(8): A.I(f"v_mul_f32 v{O+i}, v{O+i}, v{tmp+X}")
        for i in range(4): A.I(f"v_cvt_pk_bf16_f32 v{SA+4*X+i}, v{O+2*i}, v{O+2*i+1}")
        A.VM(f"buffer_store_dwordx4 v[{SA+4*X}:{SA+4*X+3}], v2, {WSR}, s{so} offen{STL()}", "st")
    stamp(A, "att_stored")
    A.I(f"s_lshl_b32 s{sT}, s{sQB}, 5"); A.I(f"s_add_u32 s{sT}, s{sT}, s{sH}")
    post_flag(A, F_ATT, sT, FLL())
    stamp(A, "att_posted")
    O = Asm()
    O.L(slow)
    mA, mB, sC, sA = tmp, tmp+1, sRot, sM
    O.I(f"v_mov_b32 v{mA}, 0xff800000"); O.I(f"v_mov_b32 v{mB}, 0xff800000")
    O.I(f"s_mov_b32 s{sC}, 0"); O.I(f"s_mov_b32 s{sA}, s{sK}")
    O.L(f"{slow}_mx")
    O.I(f"buffer_load_dwordx4 v[{Kr[0]}:{Kr[0]+3}], v2, {WSR}, s{sA} offen{LD}")
    O.I(f"s_add_u32 s{sA}, s{sA}, 1024"); O.I("s_waitcnt vmcnt(0)")
    mfma(O, v(SA,16), v(Kr[0],4), v(QA,4), "0"); mfma(O, v(SB,16), v(Kr[0],4), v(QB_,4), "0")
    O.nop(16)
    for i in range(8): O.I(f"v_max3_f32 v{mA}, v{SA+2*i}, v{SA+2*i+1}, v{mA}")
    for i in range(8): O.I(f"v_max3_f32 v{mB}, v{SB+2*i}, v{SB+2*i+1}, v{mB}")
    O.I(f"s_add_u32 s{sC}, s{sC}, 1"); O.I(f"s_cmp_lt_u32 s{sC}, 64"); O.I(f"s_cbranch_scc1 {slow}_mx")
    for m, Cc in ((mA, CA), (mB, CB)):
        O.I(f"v_mov_b32 v{tmp+2}, v{m}"); O.nop(2)
        O.I(f"v_permlane32_swap_b32 v{m}, v{tmp+2}"); O.nop(1)
        O.I(f"v_max_f32 v{m}, v{m}, v{tmp+2}")
        for i in range(16): O.I(f"v_sub_f32 v{Cc+i}, 0, v{m}")
    for i in range(32): O.I(f"v_mov_b32 v{OA+i}, 0")
    for i in range(8): O.I(f"v_mov_b32 v{VAr[0]+i}, 0x3f803f80")
    O.I(f"v_and_b32 v{tmp+2}, 0xffff, v{V_VA}")
    O.I(f"s_mov_b32 s{sC}, 0"); O.I(f"s_mov_b32 s{sA}, s{sK}")
    O.L(f"{slow}_pv")
    O.I(f"buffer_load_dwordx4 v[{Kr[0]}:{Kr[0]+3}], v2, {WSR}, s{sA} offen{LD}")
    O.I(f"s_add_u32 s{sEnd}, s{sA}, {VF-KF:#x}")
    O.I("s_mov_b32 exec_lo, 0xffff"); O.I("s_mov_b32 exec_hi, 0xffff")
    O.I(f"buffer_load_dwordx4 v[{VAr[0]}:{VAr[0]+3}], v{tmp+2}, {WSR}, s{sEnd} offen{LD}")
    O.I(f"buffer_load_dwordx4 v[{VBr[0]}:{VBr[0]+3}], v{tmp+2}, {WSR}, s{sEnd} offen offset:512{LD}")
    O.I("s_mov_b64 exec, -1")
    O.I(f"s_add_u32 s{sA}, s{sA}, 1024"); O.I("s_waitcnt vmcnt(0)")
    mfma(O, v(SA,16), v(Kr[0],4), v(QA,4), v(CA,16)); mfma(O, v(SB,16), v(Kr[0],4), v(QB_,4), v(CB,16))
    O.nop(16)
    for i in range(32): O.I(f"v_exp_f32 v{SA+i}, v{SA+i}")
    O.nop(2)
    for Oo, S in ((OA, SA), (OB, SB)):
        O.I(f"v_smfmac_f32_32x32x32_bf16 v[{Oo}:{Oo+15}], v[{VAr[0]}:{VAr[0]+3}], v[{S}:{S+7}], v{idx}")
        O.I(f"v_smfmac_f32_32x32x32_bf16 v[{Oo}:{Oo+15}], v[{VBr[0]}:{VBr[0]+3}], v[{S+8}:{S+15}], v{idx}")
    O.nop(8)
    O.I(f"s_add_u32 s{sC}, s{sC}, 1"); O.I(f"s_cmp_lt_u32 s{sC}, 64"); O.I(f"s_cbranch_scc1 {slow}_pv")
    O.nop(16)
    O.I(f"v_rcp_f32 v{tmp}, v{OA+8}"); O.I(f"v_rcp_f32 v{tmp+1}, v{OB+8}"); O.nop(1)
    O.I(f"s_branch {fin}")
    return O

def ph_res(A, kind, W, sched, pre):
    KH = 16 if kind == 'wo' else 43
    KS = 2*KH
    SRC, DST, STO, BLK, EX = (OF, XA, STA, WO_BLK, WO_EX) if kind == 'wo' else (HF, XF_, STF, DN_BLK, DN_EX)
    sTp, sC, sKh, sTT, sAo, sT, sCt, sR, sSt = 70, 71, 72, 73, 74, 75, 76, 77, 78
    vB, vW, acc0, acc1, vTmp = 4, 12, 36, 52, 68
    coords_tc(A, sTp, sC)
    A.I(f"s_lshr_b32 s{sKh}, s{S_W}, 1")
    A.I(f"s_lshl_b32 s{sTT}, s{sTp}, 1"); A.I(f"s_and_b32 s{sT}, s{S_W}, 1"); A.I(f"s_add_u32 s{sTT}, s{sTT}, s{sT}")
    A.I(f"s_mul_i32 s{sAo}, s{sTT}, {KS*1024}"); A.I(f"s_mul_i32 s{sT}, s{sKh}, {KH*1024}"); A.I(f"s_add_u32 s{sAo}, s{sAo}, s{sT}")
    A.I(f"s_add_u32 s{sAo}, s{sAo}, s{S_LB}"); A.I(f"s_add_u32 s{sAo}, s{sAo}, {SRC:#x}")
    A.I(f"s_lshl_b32 s{sCt}, s{sC}, 1"); A.I(f"s_add_u32 s{sCt}, s{sCt}, s{sKh}")
    A.I(f"s_lshl_b32 s{sR}, s{sTT}, 15"); A.I(f"s_lshl_b32 s{sT}, s{sCt}, 11"); A.I(f"s_add_u32 s{sR}, s{sR}, s{sT}")
    A.I(f"s_add_u32 s{sR}, s{sR}, s{S_LB}"); A.I(f"s_add_u32 s{sR}, s{sR}, {DST:#x}")
    A.I(f"s_lshl_b32 s{sSt}, s{sTT}, 12"); A.I(f"s_add_u32 s{sSt}, s{sSt}, s{S_LB}"); A.I(f"s_add_u32 s{sSt}, s{sSt}, {STO:#x}")
    A.I(f"s_lshl_b32 s{sT}, s{sC}, 9"); A.I(f"s_add_u32 s{sSt}, s{sSt}, s{sT}"); A.I(f"s_lshl_b32 s{sT}, s{sKh}, 3"); A.I(f"s_add_u32 s{sSt}, s{sSt}, s{sT}")
    A.I(f"s_lshl_b32 s{sT}, s{sKh}, 6"); A.I(f"v_xor_b32 v{vB}, s{sT}, v{V_T128}")
    A.I(f"s_lshl_b32 s{sT}, s{sKh}, 11"); A.I(f"v_add_u32 v{vB}, s{sT}, v{vB}"); A.I(f"v_xor_b32 v{vB+1}, 64, v{vB}")
    mk_windows(A, vB, vB, 3, 2); mk_windows(A, vB+1, vB+1, 3, 2)
    A.I(f"s_lshl_b32 s{sT}, s{S_W}, 12"); A.I(f"s_add_u32 s{sT}, s{sT}, {EX}")
    A.I(f"v_add_u32 v{vTmp}, s{sT}, v2"); A.I(f"s_xor_b32 s{sT}, s{S_W}, 2"); A.I(f"s_lshl_b32 s{sT}, s{sT}, 12"); A.I(f"s_add_u32 s{sT}, s{sT}, {EX}")
    A.I(f"v_add_u32 v{vTmp+1}, s{sT}, v2")
    for i in range(8):
        A.I(f"v_lshlrev_b32 v{acc0+2*i}, 16, v{V_RES+i}"); A.I(f"v_and_b32 v{acc0+2*i+1}, 0xffff0000, v{V_RES+i}")
    if kind == 'wo':
        A.I(f"s_lshl_b32 s{sT}, s{S_X}, 5"); poll(A, F_ATT, sT, 32)
    else:
        A.I(f"s_lshr_b32 s{sT}, s{sTp}, 1"); A.I(f"s_lshl_b32 s{sT}, s{sT}, 4"); poll(A, F_GU, sT, 15)
    stamp(A, kind + "_polled")
    A.I("s_barrier")
    X = x_feeder(A, sAo, KH)
    X.emit(12)
    def rd(i, q, p):
        k, o = win(BLK[i])
        return [(f"ds_read_b64_tr_b16 v[{p+2*hh}:{p+2*hh+1}], v{vB+2*k+q} offset:{o+1024*hh}", f"k{i}q{q}") for hh in range(2)]
    seq = [(i, q) for i in range(KH) for q in range(2)]
    DEP = 4
    for j in range(DEP-1):
        for r in rd(*seq[j], vW + 4*(j % DEP)): A.LD(*r)
    for j, (i, q) in enumerate(seq):
        if q == 0:
            if kind == 'dn' and i in (12, 31): stamp(A, f"dn_i{i}")
            sched(i, -1, X)
            A.wait_vm(f"x{i}")
            if i == 0: stamp(A, kind + "_x0")
        A.wait_lg(f"k{i}q{q}")
        mfma(A, v((acc0, acc1)[q],16), v(vW + 4*(j % DEP),4), a(4*i,4), "0" if (i == 0 and q == 1) else None)
        if j + DEP - 1 < len(seq):
            for r in rd(*seq[j+DEP-1], vW + 4*((j+DEP-1) % DEP)): A.LD(*r)
        sched(i, q, X)
    assert not len(W) and not len(X), (len(W), len(X))
    stamp(A, kind + "_loop")
    A.I(f"s_lshl_b32 s{sT}, s{sTp}, 3"); A.I(f"s_add_u32 s{sT}, s{sT}, s{sC}")
    A.nop(10)
    for q in range(4): A.I(f"ds_write_b128 v{vTmp}, v[{acc1+4*q}:{acc1+4*q+3}] offset:{1024*q}")
    A.I("s_waitcnt lgkmcnt(0)"); A.I("s_barrier")
    for q in range(4): A.I(f"ds_read_b128 v[{acc1+4*q}:{acc1+4*q+3}], v{vTmp+1} offset:{1024*q}")
    for q in range(4):
        A.I(f"s_waitcnt lgkmcnt({3-q})")
        for i in (0, 2): A.I(f"v_pk_add_f32 v[{acc0+4*q+i}:{acc0+4*q+i+1}], v[{acc0+4*q+i}:{acc0+4*q+i+1}], v[{acc1+4*q+i}:{acc1+4*q+i+1}]")
        for i in (0, 1): A.I(f"v_cvt_pk_bf16_f32 v{V_RES+2*q+i}, v{acc0+4*q+2*i}, v{acc0+4*q+2*i+1}")
        if kind == 'dn' and q == 1: A.I(f"s_cmp_eq_u32 s{S_L}, 1"); A.I(f"s_cbranch_scc1 {pre}_final")
        if q & 1: A.VM(f"buffer_store_dwordx4 v[{V_RES+2*q-2}:{V_RES+2*q+1}], v2, {WSR}, s{sR} offen offset:{1024*(q>>1)}{STL()}", "st")
    sm, sq = vTmp+2, vTmp+4
    A.I(f"v_pk_add_f32 v[{sm}:{sm+1}], v[{acc0}:{acc0+1}], v[{acc0+2}:{acc0+3}]")
    A.I(f"v_pk_mul_f32 v[{sq}:{sq+1}], v[{acc0}:{acc0+1}], v[{acc0}:{acc0+1}]")
    A.I(f"v_pk_fma_f32 v[{sq}:{sq+1}], v[{acc0+2}:{acc0+3}], v[{acc0+2}:{acc0+3}], v[{sq}:{sq+1}]")
    for i in range(4, 16, 2):
        A.I(f"v_pk_add_f32 v[{sm}:{sm+1}], v[{sm}:{sm+1}], v[{acc0+i}:{acc0+i+1}]")
        A.I(f"v_pk_fma_f32 v[{sq}:{sq+1}], v[{acc0+i}:{acc0+i+1}], v[{acc0+i}:{acc0+i+1}], v[{sq}:{sq+1}]")
    A.I(f"v_add_f32 v{sm}, v{sm}, v{sm+1}"); A.I(f"v_add_f32 v{sm+1}, v{sq}, v{sq+1}")
    A.I(f"v_mov_b32 v{sq}, v{sm}"); A.I(f"v_mov_b32 v{sq+1}, v{sm+1}"); A.nop(1)
    A.I(f"v_permlane32_swap_b32 v{sm}, v{sq}"); A.I(f"v_permlane32_swap_b32 v{sm+1}, v{sq+1}")
    A.I(f"v_pk_add_f32 v[{sm}:{sm+1}], v[{sm}:{sm+1}], v[{sq}:{sq+1}]")
    A.I("s_mov_b32 exec_hi, 0")
    A.VM(f"buffer_store_dwordx2 v[{sm}:{sm+1}], v2, {WSR}, s{sSt} offen{STL()}", "st")
    A.I("s_mov_b32 exec_hi, -1")
    stamp(A, kind + "_stored")
    return sT

def final_store(A, pre):
    sTT, sCt, sT, sR, acc0, acc1, vTmp = 73, 76, 75, 77, 36, 52, 68
    A.L(pre + "_final")
    for q in (2, 3):
        A.I(f"s_waitcnt lgkmcnt({3-q})")
        for i in (0, 2): A.I(f"v_pk_add_f32 v[{acc0+4*q+i}:{acc0+4*q+i+1}], v[{acc0+4*q+i}:{acc0+4*q+i+1}], v[{acc1+4*q+i}:{acc1+4*q+i+1}]")
        for i in (0, 1): A.I(f"v_cvt_pk_bf16_f32 v{V_RES+2*q+i}, v{acc0+4*q+2*i}, v{acc0+4*q+2*i+1}")
    A.I(f"v_lshrrev_b32 v{vTmp+1}, 5, v1"); A.I(f"v_lshl_add_u32 v{vTmp}, v{vTmp+1}, 3, v{V_ROW}")
    A.I(f"s_lshl_b32 s{sT}, s{sTT}, 15"); A.I(f"s_lshl_b32 s{sR}, s{sCt}, 6"); A.I(f"s_add_u32 s{sT}, s{sT}, s{sR}")
    for b in (0, 4):
        A.I(f"v_permlane32_swap_b32 v{V_RES+b}, v{V_RES+b+2}"); A.I(f"v_permlane32_swap_b32 v{V_RES+b+1}, v{V_RES+b+3}")
        A.I(f"buffer_store_dwordx4 v[{V_RES+b}:{V_RES+b+3}], v{vTmp}, {SR(R_OUT)}, s{sT} offen offset:{8*b}")
    if INSTR:
        A.I("s_waitcnt vmcnt(0)")
        stamp(A, "end")
        A.I("s_memrealtime s[98:99]"); A.I("s_waitcnt lgkmcnt(0)")
        A.I("v_writelane_b32 v236, s98, 63"); A.I("v_writelane_b32 v236, s101, 62")
        A.I(f"s_lshl_b32 s98, s{S_R}, 3"); A.I(f"s_add_u32 s98, s98, s{S_X}"); A.I(f"s_lshl_b32 s98, s98, 2"); A.I(f"s_add_u32 s98, s98, s{S_W}"); A.I("s_lshl_b32 s98, s98, 9"); A.I(f"s_add_u32 s98, s98, {DBGO:#x}")
        A.I(f"buffer_store_dword v235, v{V_FL}, {WSR}, s98 offen")
        A.I(f"buffer_store_dword v236, v{V_FL}, {WSR}, s98 offen offset:256")
    A.I("s_endpgm")

def ph_gu(A, W, Wdn):
    sI, sG, sU0, sTT, sXo, sT, sH, sDup, sWa = 70, 71, 72, 73, 74, 75, 76, 77, 78
    vB, vST, vCS, vMF, vMean, vRstd, vTmp, vW, vO, acc = 4, 12, 28, 52, 56, 57, 58, 64, 80, 112
    coords_ij(A, sI, sG); gu_u0(A, sU0)
    A.I(f"s_lshl_b32 s{sTT}, s{sI}, 2"); A.I(f"s_add_u32 s{sTT}, s{sTT}, s{S_W}")
    A.I(f"s_lshl_b32 s{sXo}, s{sTT}, 15"); A.I(f"s_add_u32 s{sXo}, s{sXo}, s{S_LB}"); A.I(f"s_add_u32 s{sXo}, s{sXo}, {XA:#x}")
    A.I(f"v_bfe_u32 v{vTmp}, v1, 4, 1"); A.I(f"v_lshl_add_u32 v{vB}, v{vTmp}, 10, v{V_T64}"); A.I(f"v_xor_b32 v{vB+1}, 32, v{vB}")
    mk_windows(A, vB, vB, 3, 2); mk_windows(A, vB+1, vB+1, 3, 2)
    A.I(f"s_lshl_b32 s{sT}, s{sU0}, 10"); A.I(f"s_add_u32 s{sT}, s{sT}, {CSG:#x}")
    for u in range(6):
        if u == 4: A.I(f"s_add_u32 s{sT}, s{sT}, 4096")
        A.VM(f"buffer_load_dwordx4 v[{vCS+4*u}:{vCS+4*u+3}], v2, {WSR}, s{sT} offen offset:{1024*(u%4)}{LD}", "cs")
    A.I(f"s_mul_i32 s{sH}, s{sTT}, 86"); A.I(f"s_add_u32 s{sH}, s{sH}, s{sU0}"); A.I(f"s_lshl_b32 s{sH}, s{sH}, 10")
    A.I(f"s_add_u32 s{sH}, s{sH}, s{S_LB}"); A.I(f"s_add_u32 s{sH}, s{sH}, {HF:#x}")
    A.I(f"s_mul_i32 s{sDup}, s{sG}, 6"); A.I(f"s_sub_u32 s{sDup}, s{sDup}, s{sU0}")
    A.I(f"s_mul_i32 s{sWa}, s{S_R}, 49152"); A.I(f"s_mul_i32 s{sT}, s{S_W}, 12288"); A.I(f"s_add_u32 s{sWa}, s{sWa}, s{sT}")
    A.I(f"s_mul_i32 s{sWa+1}, s{S_R}, 44032"); A.I(f"s_mul_i32 s{sT}, s{S_W}, 11264"); A.I(f"s_add_u32 s{sWa+1}, s{sWa+1}, s{sT}")
    pre_groups = W.n // 2
    A.I(f"s_lshl_b32 s{sT}, s{sI}, 4")
    poll(A, F_WO, sT, 16)
    stamp(A, "gu_polled")
    A.I("s_barrier")
    A.I(f"s_lshl_b32 s{sT}, s{sTT}, 12"); A.I(f"s_add_u32 s{sT}, s{sT}, s{S_LB}"); A.I(f"s_add_u32 s{sT}, s{sT}, {STA:#x}")
    X = x_feeder(A, sXo, 32)
    X.emit(6); stats_load(A, vST, sT); X.emit(2)
    def rd(n, q, p):
        k, o = win(GU_GRP[n//4] + (n % 4)*2048)
        return [(f"ds_read_b64_tr_b16 v[{p+2*hh}:{p+2*hh+1}], v{vB+2*k+q} offset:{o+512*hh}", f"k{n}q{q}") for hh in range(2)]
    seq = [(n, q) for n in range(96) for q in range(2)]
    DEP = 4
    for j in range(DEP-1):
        for r in rd(*seq[j], vW + 4*(j % DEP)): A.LD(*r)
    V = ilist(A, stats_reduce_list(vST) + stats_fin_list(vST, vMean, vRstd, vMF, vTmp) + ["s_nop 0", f"v_mul_f32 v{vTmp}, v{vRstd}, v{vRstd}"])
    def epi(u):
        b = acc + 16*u; o = vO + 4*(u & 1)
        L = [f"v_mul_f32 v{b+i}, v{b+i}, v{vTmp}" for i in range(8)] + [f"v_mul_f32 v{b+i}, v{b+i}, v{b+8+i}" for i in range(8)]
        L += [f"v_cvt_pk_bf16_f32 v{o+i}, v{b+2*i}, v{b+2*i+1}" for i in range(4)]
        F = ilist(A, L)
        def st():
            lab = A.label("gu_skip")
            A.I(f"s_cmp_gt_u32 s{sDup}, {u}"); A.I(f"s_cbranch_scc1 {lab}")
            A.VM(f"buffer_store_dwordx4 v[{o}:{o+3}], v2, {WSR}, s{sH} offen offset:{1024*(u%4)}{STL()}", "st")
            A.L(lab)
            if u == 3: A.I(f"s_add_u32 s{sH}, s{sH}, 4096")
        F.add(st)
        return F.q
    E = Feeder(A)
    Wm = Feeder(A)
    if P['warm_gu']:
        for q in range(2):
            Wm.add(lambda q=q: A.VM(f"buffer_load_dword a{128+q}, v{V_LN}, {WSR}, s{sWa} offen offset:{4092*q}", "warm"))
    visible = pre_groups
    for j, (n, q) in enumerate(seq):
        p_, ks = divmod(n, 32)
        jn = j + DEP - 1
        if jn < len(seq):
            gn = seq[jn][0] // 4
            if gn >= visible or (q == 0 and n in (32, 64)):
                pass
        if q == 0 and n in (16, 32, 48, 64, 80): stamp(A, f"gu_n{n}")
        if q == 0 and n in (32, 64):
            for u in (2*p_-2, 2*p_-1): mfma(A, v(acc+16*u,16), v(vCS+4*u,4), v(vMF,4))
            E.q += epi(2*p_-2) + epi(2*p_-1)
        if q == 0 and n < 32:
            A.wait_vm(f"x{n}")
            if n == 0: stamp(A, "gu_x0")
        A.wait_lg(f"k{n}q{q}")
        mfma(A, v(acc+32*p_+16*q,16), v(vW + 4*(j % DEP),4), a(4*ks,4), "0" if ks == 0 else None)
        if jn < len(seq):
            gn = seq[jn][0] // 4
            if gn >= visible:
                iss = W.n // 2
                tgt = min(iss, 19) if visible < 19 else iss
                assert tgt > gn, (n, gn, iss)
                A.wait_vm(f"wg{tgt-1}"); A.I("s_barrier"); visible = tgt
            for r in rd(*seq[jn], vW + 4*(jn % DEP)): A.LD(*r)
        if q == 1 and n in (33, 65): A.I("s_barrier")
        if n < 32:
            if q == 0: X.emit(1)
            if n >= 8: V.emit(1 if n >= 20 else 2)
        else:
            if ks >= 3: E.emit(2)
            if q == 0 and ks >= 2:
                if p_ == 1 and ks in (22, 27): Wm.emit(1)
                elif len(W): W.emit(1)
                elif Wdn.n < (6 if p_ == 1 else 24): Wdn.emit(1)
    assert not len(V) and not len(W) and not len(X) and not len(E) and not len(Wm) and Wdn.n == 24, (len(V), len(W), len(E), len(Wm), Wdn.n)
    for u in (4, 5): mfma(A, v(acc+16*u,16), v(vCS+4*u,4), v(vMF,4))
    stamp(A, "gu_loop")
    A.I("s_barrier")
    A.I(f"s_lshl_b32 s{sT}, s{sI}, 4"); A.I(f"s_add_u32 s{sT}, s{sT}, s{sG}")
    A.nop(8)
    E.q += epi(4) + epi(5); E.flush()
    stamp(A, "gu_stored")
    return sT

P = dict(warm0=1, warm_att=1, warm_gu=1, force_g=0, warm_dn=1, q_in_dn=6)
def layer_code(A, pre):
    A.L(pre + "_layer")
    ph_qkv(A)
    Wgu = gu_w_feeder(A)
    O = ph_attn(A, pre, Wgu)
    Wgu.emit(20 - Wgu.n)
    W0 = Feeder(A)
    def s_wo(i, q, X):
        if q == 0 and len(X): X.emit(1)
    sT = ph_res(A, 'wo', W0, s_wo, pre)
    Wgu.emit(4)
    post_flag(A, F_WO, sT, FLL())
    stamp(A, "wo_posted")
    Wgu.emit(38 - Wgu.n)
    Wdn = res_w_feeder(A, 'dn')
    sT = ph_gu(A, Wgu, Wdn)
    Wdn.emit(4)
    post_flag(A, F_GU, sT, FLL())
    stamp(A, "gu_posted")
    Wdn.emit(12)
    Wq = qkv_w_feeder(A, QK_GRP)
    def s_dn(i, q, X):
        if q == -1:
            if i == 12: A.I("s_barrier")
            if i == 31: A.wait_vm("wdn42"); A.I("s_barrier")
        if q == 0: X.emit(1)
        if q == 1 and (Wdn.n < 40 or (i >= 12 and len(Wdn))): Wdn.emit(1)
        if i >= 31 and q == 1 and Wq.n < P['q_in_dn']: Wq.emit(1)
    sT = ph_res(A, 'dn', Wdn, s_dn, pre)
    Wq.emit(4)
    post_flag(A, F_DN, sT, FLL())
    stamp(A, "dn_posted")
    Wq.flush()
    A.I(f"s_add_u32 s{S_LB}, s{S_LB}, {LSTR:#x}"); A.I(f"s_add_u32 s{S_L}, s{S_L}, 1")
    if INSTR: A.I("v_mov_b32 v235, v236")
    A.I(f"s_branch {pre}_layer")
    final_store(A, pre)
    A.lines += O.lines

def build():
    A = Asm()
    setup(A)
    if INSTR:
        A.I("s_memrealtime s[100:101]"); A.I("s_waitcnt lgkmcnt(0)"); A.I("s_mov_b32 s101, s100"); A.I("v_mov_b32 v236, 0")
    stamp(A, "start")
    ph_qkv0(A)
    A.L("L_end"); A.L("L_abort"); A.I("s_endpgm")
    Mode.local = True; layer_code(A, "L")
    Mode.local = False; layer_code(A, "G")
    return A.text()

def main(out):
    body = build()
    name = NAME + "_kernel"
    hdr = open("cdna_kernels/" + NAME + ".s.ref").read().split("; Override launch")[0]
    txt = hdr + "; @launch grid=(256,1,1) block=(256,1,1) lds=163840\n" + '.amdgcn_target "amdgcn-amd-amdhsa--gfx950"\n'
    txt += f".text\n.globl {name}\n.p2align 8\n.type {name},@function\n{name}:\n" + body
    txt += f""".section .rodata,"a"
.p2align 6
.amdhsa_kernel {name}
  .amdhsa_next_free_vgpr 512
  .amdhsa_next_free_sgpr 102
  .amdhsa_accum_offset 256
  .amdhsa_group_segment_fixed_size 0
  .amdhsa_kernarg_size 80
  .amdhsa_user_sgpr_count 2
  .amdhsa_user_sgpr_kernarg_segment_ptr 1
  .amdhsa_system_sgpr_workgroup_id_x 1
.end_amdhsa_kernel
"""
    open(out, "w").write(txt)
    if INSTR: open(out + ".stamps", "w").write("\n".join(STN))

if __name__ == "__main__":
    INSTR = int(sys.argv[2]) if len(sys.argv) > 2 else 0
    for kv in sys.argv[3:]:
        k, val = kv.split("="); P[k] = int(val)
    main(sys.argv[1])
```

```python
import sys, math
from asmlib import *

NAME = "interleave_layers__mha_block__glu_gated_bilinear__prompt"
WFQ, WFG, CSQ, CSG, FLG, STX, OF, XB, HF, KV = 0, 0x200000, 0x4C0000, 0x4D0000, 0x4F0000, 0x500000, 0x600000, 0x800000, 0xA00000, 0x1000000
LSTR = 8192
KVS = 0x400000
F_QKV, F_ATT, F_WO, F_GU, F_DN, F_RF = [FLG + 1024*i for i in range(6)]
DBGO = 0x1800000
WS_USED = 0x1900000
M32 = 0xffffffff

S_W = 3
P_AX, P_WQKV, P_WO, P_BX, P_G, P_U, P_D, P_OUT, P_DBG, P_WS = 16, 18, 20, 22, 24, 26, 28, 30, 32, 34
R_WS, R_WQKV, R_WO, R_G, R_U, R_D, R_AX, R_OUT = 36, 40, 44, 48, 52, 56, 60, 64
S_LB, S_L = 68, 69
R_DBG = 4
S_SPIN, S_X, S_R, S_XCC = 8, 9, 10, 11
LOG2E = 1.4426950408889634
WSR = f"s[{R_WS}:{R_WS+3}]"
def SR(r): return f"s[{r}:{r+3}]"
V_RES = 248
V_FL, V_T64, V_T128, V_DQ, V_DR, V_DG, V_DG2, V_KA, V_VA, V_RANK, V_ROW, V_LN, V_TA, V_TB, V_TC = 247, 246, 245, 244, 243, 242, 241, 240, 239, 238, 237, 234, 233, 232, 231
LD = " sc1"
class Mode:
    local = True
def STL(): return "" if Mode.local else " sc1"
def FLL(): return "" if Mode.local else " sc0 sc1"

INSTR = 0
STN = []
NPL = 64
def stamp(A, name):
    if not INSTR: return
    if name not in STN: STN.append(name)
    i = STN.index(name)
    A.I("s_memrealtime s[98:99]" if INSTR == 2 else "s_memtime s[98:99]")
    A.I("s_waitcnt lgkmcnt(0)")
    A.I(f"v_writelane_b32 v236, s98, {i}")
    A.lg = []

def srd(A, r, p, nbytes):
    A.I(f"s_mov_b32 s{r}, s{p}"); A.I(f"s_and_b32 s{r+1}, s{p+1}, 0xffff")
    A.I(f"s_mov_b32 s{r+2}, {nbytes:#x}"); A.I(f"s_mov_b32 s{r+3}, 0x20000")

def mfma(A, d, x, y, c=None):
    c = d if c is None else c
    A.I(f"v_mfma_f32_32x32x16_bf16 {d}, {x}, {y}, {c}")

WIN = 61440
def win(addr): return addr // WIN, addr % WIN
def mk_windows(A, dst, src, n=3, stride=1):
    for k in range(n):
        if k == 0 and dst == src: continue
        A.I(f"v_add_u32 v{dst+stride*k}, {k*WIN}, v{src}" if k else f"v_mov_b32 v{dst}, v{src}")

class Feeder:
    def __init__(self, A): self.A = A; self.q = []; self.n = 0
    def add(self, fn): self.q.append(fn)
    def emit(self, n=1):
        for _ in range(n):
            if self.q: self.q.pop(0)(); self.n += 1
    def flush(self): self.emit(len(self.q))
    def __len__(self): return len(self.q)

def ilist(A, L):
    F = Feeder(A)
    for i in L:
        if isinstance(i, tuple):
            F.add((lambda i=i: A.LD(i[1], i[2])) if i[0] == 'ds' else (lambda i=i: A.VM(i[1], i[2])))
        else: F.add(lambda i=i: A.I(i))
    return F

def stats_load(A, dst, s_off):
    for q in range(4):
        A.VM(f"buffer_load_dwordx4 v[{dst+4*q}:{dst+4*q+3}], v2, {WSR}, s{s_off} offen offset:{1024*q}{LD}", "stats")
def stats_reduce_list(src):
    L = []
    for k in (8, 4, 2):
        for i in range(k): L.append(f"v_add_f32 v{src+i}, v{src+i}, v{src+i+k}")
    return L
def stats_fin_list(src, vmean, vrstd, mfrag, tmp):
    return [f"v_mov_b32 v{tmp}, v{src}", f"v_mov_b32 v{tmp+1}, v{src+1}", "s_nop 0",
          f"v_permlane32_swap_b32 v{src}, v{tmp}", f"v_permlane32_swap_b32 v{src+1}, v{tmp+1}",
          f"v_add_f32 v{src}, v{src}, v{tmp}", f"v_add_f32 v{src+1}, v{src+1}, v{tmp+1}",
          f"v_mul_f32 v{vmean}, {1.0/512}, v{src}", f"v_mul_f32 v{src+1}, {1.0/512}, v{src+1}",
          f"v_fma_f32 v{src+1}, -v{vmean}, v{vmean}, v{src+1}", f"v_max_f32 v{src+1}, 0, v{src+1}",
          f"v_add_f32 v{src+1}, {f32bits(1e-5):#x}, v{src+1}", f"v_rsq_f32 v{vrstd}, v{src+1}",
          f"v_sub_f32 v{tmp}, 0, v{vmean}", f"v_cvt_pk_bf16_f32 v{tmp+1}, v{tmp}, v{tmp}",
          f"v_and_b32 v{tmp+1}, 0xffff0000, v{tmp+1}", f"v_sub_f32 v{tmp+2}, v{tmp}, v{tmp+1}",
          f"v_cvt_pk_bf16_f32 v{mfrag}, v{tmp+1}, v{tmp+2}"] + [f"v_mov_b32 v{mfrag+i}, v{mfrag}" for i in (1, 2, 3)]
def rstd_tr_list(lds, vrstd, vRT, tmp, st):
    return [f"s_lshl_b32 s{st}, s{S_W}, 7", f"s_add_u32 s{st}, s{st}, {lds}",
          f"v_and_b32 v{tmp}, 31, v1", f"v_lshlrev_b32 v{tmp}, 2, v{tmp}", f"v_add_u32 v{tmp}, s{st}, v{tmp}",
          ("ds", f"ds_write_b32 v{tmp}, v{vrstd}", "rw"),
          f"v_lshrrev_b32 v{tmp+1}, 5, v1", f"v_lshlrev_b32 v{tmp+1}, 4, v{tmp+1}", f"v_add_u32 v{tmp+1}, s{st}, v{tmp+1}"] + \
         [("ds", f"ds_read_b128 v[{vRT+4*q}:{vRT+4*q+3}], v{tmp+1} offset:{32*q}", "rt") for q in range(4)]

def post_store(A, flagbase, s_idx, pol):
    lab = A.label("nopost")
    A.I(f"s_cmp_lg_u32 s{S_W}, 0"); A.I(f"s_cbranch_scc1 {lab}")
    A.I(f"s_lshl_b32 s96, s{s_idx}, 2"); A.I(f"s_add_u32 s96, s96, s{S_LB}"); A.I(f"s_add_u32 s96, s96, {flagbase & M32:#x}")
    A.I("v_mov_b32 v3, 1"); A.I("s_mov_b64 exec, 1")
    A.I(f"buffer_store_dword v3, v2, {WSR}, s96 offen{pol}")
    A.I("s_mov_b64 exec, -1")
    A.L(lab)
def post_flag(A, flagbase, s_idx, pol):
    A.wait_vm("st"); A.I("s_barrier")
    post_store(A, flagbase, s_idx, pol)

def poll(A, flagbase, s_first, n):
    lab = A.label("poll")
    A.I(f"s_lshl_b32 s96, s{s_first}, 2"); A.I(f"s_add_u32 s96, s96, s{S_LB}"); A.I(f"s_add_u32 s96, s96, {flagbase & M32:#x}")
    A.I(f"s_mov_b32 s{S_SPIN}, 0")
    A.I(f"s_mov_b32 exec_lo, {(1 << n) - 1:#x}"); A.I("s_mov_b32 exec_hi, 0")
    A.L(lab)
    A.I(f"buffer_load_dword v3, v{V_FL}, {WSR}, s96 offen sc0 sc1")
    A.I(f"s_add_u32 s{S_SPIN}, s{S_SPIN}, 1")
    A.I(f"s_cmp_gt_u32 s{S_SPIN}, 0x80000"); A.I("s_cbranch_scc1 L_abort")
    A.I("s_waitcnt vmcnt(0)")
    A.I("v_cmp_eq_u32 vcc, 1, v3")
    A.nop(2)
    A.I("s_cmp_eq_u64 vcc, exec")
    A.I(f"s_cbranch_scc0 {lab}")
    A.I("s_mov_b64 exec, -1")
    A.vm = []

WO_BLK = [135168 + 4096*p for p in range(7)] + [4096*p for p in range(9)]
WO_EX = 36864
GU_GRP = [53248 + 8192*g for g in range(8)] + [118784, 126976, 135168, 143360, 151552, 0, 8192, 16384] + \
         [24576, 32768, 40960] + [53248 + 8192*g for g in range(5)]
DN_BLK = [94208 + 4096*p for p in range(6)] + [118784 + 4096*p for p in range(11)] + [4096*p for p in range(6)] + [49152] + \
         [24576 + 4096*p for p in range(6)] + [53248 + 4096*p for p in range(10)] + [94208 + 4096*p for p in range(3)]
DN_EX = 118784
QK_GRP = [0, 12288, 24576, 36864, 106496, 135168, 147456, 53248]
QK_SCR = 159744
assert len(DN_BLK) == 43 and len(GU_GRP) == 24

def coords_ij(A, sI, sJ):
    A.I(f"s_lshl_b32 s{sI}, s{S_X}, 1"); A.I(f"s_and_b32 s{sJ}, s{S_R}, 1"); A.I(f"s_add_u32 s{sI}, s{sI}, s{sJ}")
    A.I(f"s_lshr_b32 s{sJ}, s{S_R}, 1")
def coords_tc(A, sT, sC):
    A.I(f"s_lshl_b32 s{sT}, s{S_X}, 2"); A.I(f"s_and_b32 s{sC}, s{S_R}, 3"); A.I(f"s_add_u32 s{sT}, s{sT}, s{sC}")
    A.I(f"s_lshr_b32 s{sC}, s{S_R}, 2")

def qkv_w_feeder(A, grp, raw=False):
    F = Feeder(A); sO, sM = 92, 93
    for g in range(8):
        for q in range(3):
            def f(g=g, q=q):
                if g == 0 and q == 0:
                    A.I(f"s_lshr_b32 s{sO}, s{S_R}, 1")
                    if raw:
                        A.I(f"s_lshl_b32 s{sO}, s71, 6"); A.I(f"s_mul_i32 s{sM}, s{S_W}, 49152"); A.I(f"s_add_u32 s{sO}, s{sO}, s{sM}")
                        A.I(f"s_mul_i32 s{sM}, s{S_W}, 3072")
                    else:
                        A.I(f"s_mul_i32 s{sO}, s{sO}, 98304"); A.I(f"s_mul_i32 s{sM}, s{S_W}, 3072"); A.I(f"s_add_u32 s{sO}, s{sO}, s{sM}")
                        A.I(f"s_cmp_eq_u32 s{S_L}, 1"); A.I(f"s_cselect_b32 s{sO}, 0xf0000000, s{sO}")
                A.I(f"s_add_u32 m0, s{sM}, {grp[g]}")
                A.nop(1)
                if raw: A.VM(f"buffer_load_dwordx4 v{V_DQ}, {SR(R_WQKV)}, s{sO} offen offset:{1024*q} lds", f"wq{g}")
                else: A.VM(f"buffer_load_dwordx4 v2, {WSR}, s{sO} offen offset:{1024*q}{LD} lds", f"wq{g}")
                if q == 2 and g < 7: A.I(f"s_add_u32 s{sO}, s{sO}, {196608 if raw else 12288}")
            F.add(f)
    return F

def res_w_feeder(A, kind):
    KH = 16 if kind == 'wo' else 43
    RW, BLK, sO, sM = (R_WO, WO_BLK, 80, 81) if kind == 'wo' else (R_D, DN_BLK, 88, 89)
    F = Feeder(A)
    for i in range(KH):
        def f(i=i):
            if i == 0:
                A.I(f"s_lshr_b32 s{sO}, s{S_W}, 1"); A.I(f"s_mul_i32 s{sO}, s{sO}, {KH*16384}")
                A.I(f"s_and_b32 s{sM}, s{S_W}, 1"); A.I(f"s_lshl_b32 s{sM}, s{sM}, 13"); A.I(f"s_add_u32 s{sO}, s{sO}, s{sM}")
                A.I(f"s_lshr_b32 s{sM}, s{S_R}, 2"); A.I(f"s_lshl_b32 s{sM}, s{sM}, 7"); A.I(f"s_add_u32 s{sO}, s{sO}, s{sM}")
                A.I(f"s_lshl_b32 s{sM}, s{S_W}, 10")
            A.I(f"s_add_u32 m0, s{sM}, {BLK[i]}")
            A.nop(1)
            A.VM(f"buffer_load_dwordx4 v{V_DR}, {SR(RW)}, s{sO} offen lds", f"w{kind}{i}")
            A.I(f"s_add_u32 s{sO}, s{sO}, 16384")
        F.add(f)
    return F

def gu_u0(A, dst):
    A.I(f"s_lshr_b32 s{dst}, s{S_R}, 1"); A.I(f"s_mul_i32 s{dst}, s{dst}, 6"); A.I(f"s_min_u32 s{dst}, s{dst}, 80")
def gu_w_feeder(A):
    F = Feeder(A); sO, sM = 84, 85
    for G in range(24):
        for m in range(2):
            def f(G=G, m=m):
                if G == 0 and m == 0:
                    gu_u0(A, sO); A.I(f"s_lshl_b32 s{sO}, s{sO}, 15"); A.I(f"s_lshl_b32 s{sM}, s{S_W}, 11")
                    A.I(f"s_add_u32 s{sO}, s{sO}, s{sM}"); A.I(f"s_add_u32 s{sO}, s{sO}, {WFG:#x}")
                A.I(f"s_add_u32 m0, s{sM}, {GU_GRP[G]}")
                A.nop(1)
                A.VM(f"buffer_load_dwordx4 v2, {WSR}, s{sO} offen offset:{1024*m}{LD} lds", f"wg{G}")
                if m == 1: A.I(f"s_add_u32 s{sO}, s{sO}, 8192")
            F.add(f)
    return F

def setup(A):
    A.I("s_cmp_ge_u32 s2, 256"); A.I("s_cbranch_scc1 L_end")
    A.I("s_load_dwordx16 s[16:31], s[0:1], 0")
    A.I("s_getpc_b64 s[12:13]")
    A.I("v_lshlrev_b32 v4, 6, v0")
    A.I("global_load_dword a64, v4, s[12:13]")
    A.I("s_load_dwordx4 s[32:35], s[0:1], 64")
    A.I("v_lshrrev_b32 v3, 6, v0"); A.I("v_and_b32 v1, 63, v0"); A.I("v_lshlrev_b32 v2, 4, v1")
    A.I(f"v_readfirstlane_b32 s{S_W}, v3")
    A.I(f"v_lshlrev_b32 v{V_FL}, 2, v1"); A.I(f"v_lshlrev_b32 v{V_LN}, 7, v1")
    for r in (V_TA, V_TB, V_TC): A.I(f"v_mov_b32 v{r}, 0")
    A.I(f"s_getreg_b32 s{S_XCC}, hwreg(HW_REG_XCC_ID, 0, 3)")
    A.I(f"s_and_b32 s{S_X}, s2, 7"); A.I(f"s_lshr_b32 s{S_R}, s2, 3")
    A.I(f"s_mov_b32 s{S_LB}, 0"); A.I(f"s_mov_b32 s{S_L}, 0")
    A.I("s_waitcnt lgkmcnt(0)")
    srd(A, R_AX, P_AX, 2048*512*2)
def setup2(A):
    for r, p, n in ((R_WQKV, P_WQKV, 512*1536*2), (R_WS, P_WS, WS_USED), (R_DBG, P_DBG, 256), (R_WO, P_WO, 512*512*2),
                    (R_G, P_G, 512*1376*2), (R_U, P_U, 512*1376*2), (R_D, P_D, 1376*512*2), (R_OUT, P_OUT, 2048*512*2)):
        srd(A, r, p, n)

def lane_consts(A):
    t = 4
    d = V_T64
    A.I(f"v_lshrrev_b32 v{d}, 5, v1"); A.I(f"v_lshlrev_b32 v{d}, 8, v{d}")
    A.I(f"v_bfe_u32 v{t}, v1, 2, 2"); A.I(f"v_lshl_add_u32 v{d}, v{t}, 6, v{d}")
    A.I(f"v_bfe_u32 v{t}, v1, 4, 1"); A.I(f"v_lshl_add_u32 v{d}, v{t}, 5, v{d}")
    A.I(f"v_and_b32 v{t}, 3, v1"); A.I(f"v_lshl_add_u32 v{d}, v{t}, 3, v{d}")
    d = V_T128
    A.I(f"v_lshrrev_b32 v{d}, 5, v1"); A.I(f"v_lshlrev_b32 v{d}, 9, v{d}")
    A.I(f"v_bfe_u32 v{t}, v1, 2, 2"); A.I(f"v_lshl_add_u32 v{d}, v{t}, 7, v{d}")
    A.I(f"v_bfe_u32 v{t}, v1, 3, 1"); A.I(f"v_lshl_add_u32 v{d}, v{t}, 6, v{d}")
    A.I(f"v_bfe_u32 v{t}, v1, 4, 1"); A.I(f"v_lshl_add_u32 v{d}, v{t}, 5, v{d}")
    A.I(f"v_and_b32 v{t}, 3, v1"); A.I(f"v_lshl_add_u32 v{d}, v{t}, 3, v{d}")
    d = V_DR
    A.I(f"v_lshrrev_b32 v{d}, 3, v1"); A.I(f"v_lshlrev_b32 v{d}, 10, v{d}")
    A.I(f"v_bfe_u32 v{t}, v1, 4, 1"); A.I(f"v_lshlrev_b32 v{t}, 2, v{t}")
    A.I(f"v_and_b32 v{t+1}, 7, v1"); A.I(f"v_xor_b32 v{t}, v{t}, v{t+1}")
    A.I(f"v_lshl_add_u32 v{d}, v{t}, 4, v{d}")
    d = V_DG
    A.I(f"v_lshrrev_b32 v{d}, 2, v1"); A.I(f"v_mul_u32_u24 v{d}, 2752, v{d}")
    A.I(f"v_and_b32 v{t}, 3, v1"); A.I(f"v_xor_b32 v{t+1}, 2, v{t}")
    A.I(f"v_lshl_add_u32 v{V_DG2}, v{t+1}, 4, v{d}"); A.I(f"v_lshl_add_u32 v{d}, v{t}, 4, v{d}")
    d = V_KA
    A.I(f"v_and_b32 v{d}, 0x33, v1")
    A.I(f"v_bfe_u32 v{t}, v1, 2, 1"); A.I(f"v_lshl_or_b32 v{d}, v{t}, 3, v{d}")
    A.I(f"v_bfe_u32 v{t}, v1, 3, 1"); A.I(f"v_lshl_or_b32 v{d}, v{t}, 2, v{d}")
    A.I(f"v_lshlrev_b32 v{d}, 4, v{d}")
    d = V_VA
    A.I(f"v_and_b32 v{d}, 15, v1"); A.I(f"v_lshlrev_b32 v{d}, 4, v{d}")
    A.I(f"v_bfe_u32 v{t}, v1, 4, 1"); A.I(f"v_lshl_or_b32 v{d}, v{t}, 17, v{d}")
    A.I(f"v_bfe_u32 v{t}, v1, 5, 1"); A.I(f"v_lshl_or_b32 v{d}, v{t}, 8, v{d}"); A.I(f"v_or_b32 v{d}, 1024, v{d}")
    d = V_ROW
    A.I(f"v_and_b32 v{d}, 31, v1"); A.I(f"v_lshlrev_b32 v{d}, 10, v{d}"); A.I(f"v_lshrrev_b32 v{t}, 5, v1"); A.I(f"v_lshl_add_u32 v{d}, v{t}, 3, v{d}")

def qkv_out_addr(A, sO, sJ, sTT, sT):
    A.I(f"s_lshl_b32 s{sO}, s{sTT}, 15"); A.I(f"s_lshl_b32 s{sT}, s{sJ}, 11"); A.I(f"s_add_u32 s{sO}, s{sO}, s{sT}"); A.I(f"s_add_u32 s{sO}, s{sO}, {OF:#x}")
    A.I(f"s_lshl_b32 s{sO+1}, s{sJ}, 18"); A.I(f"s_lshl_b32 s{sT}, s{sTT}, 11"); A.I(f"s_add_u32 s{sO+1}, s{sO+1}, s{sT}")
    A.I(f"s_lshl_b32 s{sT}, s{S_L}, 22"); A.I(f"s_add_u32 s{sO+1}, s{sO+1}, s{sT}"); A.I(f"s_add_u32 s{sO+1}, s{sO+1}, {KV:#x}")
    A.I(f"s_add_u32 s{sO+2}, s{sO+1}, 131072")
def fin_list(acc, scale, out, stores):
    L = []
    for hh in range(2):
        L += [f"v_mul_f32 v{acc+i}, v{acc+i}, v{scale(i)}" for i in range(8*hh, 8*hh+8)]
        L += [f"v_cvt_pk_bf16_f32 v{out+i}, v{acc+2*i}, v{acc+2*i+1}" for i in range(4*hh, 4*hh+4)]
        L.append(("vm", stores[hh], "st"))
    return L

CODE_WINDOWS = 6
JOB_LDS = 135168
XST = 98304
def ph_qkv0(A):
    sI, sJ, sTT, sT, sO, sU, sWo, sM = 70, 71, 72, 73, 74, 79, 80, 81
    vTr0, vTr1, vXb, vXr, vTmp = 5, 6, 7, 8, 10
    vSum, vMean, vRstd, vMF, vOne = 16, 18, 19, 20, 9
    vW, vQ, vK, vV, vX = 24, 48, 64, 80, 96
    vOnes = 224
    vCS = vX; vRT = vRT0 = 144 + 0*16
    stamp(A, "q0_sld")
    def code_touch():
        A.I("s_getpc_b64 s[12:13]")
        A.I(f"s_lshl_b32 s{sT}, s{S_R}, 2"); A.I(f"s_add_u32 s{sT}, s{sT}, s{S_W}"); A.I(f"s_and_b32 s{sT}, s{sT}, 31"); A.I(f"s_lshl_b32 s{sT}, s{sT}, 11")
        A.I(f"v_add_u32 v4, s{sT}, v{V_LN}")
        A.I("s_mov_b64 exec, 0xffff")
        A.VM("global_load_dword a65, v4, s[12:13]", "warm")
        A.I("s_mov_b64 exec, -1")
    def w_touch():
        A.I("v_mul_u32_u24 v4, 43, v1"); A.I("v_lshrrev_b32 v4, 9, v4")
        A.I("v_mul_u32_u24 v3, 2048-512, v4") if False else None
        A.I(f"v_mul_u32_u24 v3, {3072 - 12*256}, v4") if False else None
        A.I("v_mul_u32_u24 v3, 12, v4"); A.I("v_sub_u32 v3, v1, v3")
        A.I("v_mul_u32_u24 v4, 3072, v4")
        A.I(f"v_lshrrev_b32 v{vTmp+2}, 2, v3"); A.I(f"v_lshl_add_u32 v4, v{vTmp+2}, 10, v4")
        A.I("v_and_b32 v3, 3, v3"); A.I("v_lshl_add_u32 v4, v3, 7, v4")
        A.I(f"s_lshl_b32 s{sT}, s{S_R}, 2"); A.I(f"s_add_u32 s{sT}, s{sT}, s{S_W}"); A.I(f"s_mul_i32 s{sT}, s{sT}, 12288")
        A.I(f"s_lshr_b32 s{sO}, s{S_X}, 2"); A.I(f"s_lshl_b32 s{sO}, s{sO}, 9"); A.I(f"s_add_u32 s{sT}, s{sT}, s{sO}")
        A.I("s_mov_b32 exec_hi, 0xffff")
        A.VM(f"buffer_load_dword a64, v4, {SR(R_WQKV)}, s{sT} offen", "warm")
        A.I("s_mov_b32 exec_hi, -1")
    R = 12; sQ, sStrip, sJb = 82, 83, 91
    A.I(f"s_and_b32 s{sI}, s{S_X}, 3"); A.I(f"s_lshl_b32 s{sI}, s{sI}, 2"); A.I(f"s_and_b32 s{sT}, s{S_R}, 3"); A.I(f"s_add_u32 s{sI}, s{sI}, s{sT}")
    A.I(f"s_lshr_b32 s{sJ}, s{S_X}, 2"); A.I(f"s_lshl_b32 s{sJ}, s{sJ}, 3"); A.I(f"s_lshr_b32 s{sT}, s{S_R}, 2"); A.I(f"s_add_u32 s{sJ}, s{sJ}, s{sT}")
    A.I(f"s_lshl_b32 s{sTT}, s{sI}, 2"); A.I(f"s_add_u32 s{sTT}, s{sTT}, s{S_W}")
    A.I(f"v_lshrrev_b32 v{V_DQ}, 2, v1"); A.I(f"v_mul_u32_u24 v{V_DQ}, 3072, v{V_DQ}")
    A.I(f"v_and_b32 v4, 3, v1"); A.I(f"v_lshl_add_u32 v{V_DQ}, v4, 4, v{V_DQ}")
    A.I(f"v_lshrrev_b32 v4, 4, v1"); A.I(f"v_and_b32 v{vXb}, 15, v1"); A.I(f"v_xor_b32 v{vXb}, v{vXb}, v4")
    A.I(f"v_lshlrev_b32 v{vXb}, 4, v{vXb}"); A.I(f"v_lshl_add_u32 v{vXb}, v4, 10, v{vXb}")
    A.I(f"s_lshl_b32 s{sU}, s{S_W}, 15"); A.I(f"s_add_u32 s{sU}, s{sU}, 32768")
    A.I(f"v_lshrrev_b32 v4, 5, v1"); A.I(f"v_and_b32 v{vXr}, 15, v1"); A.I(f"v_xor_b32 v{vXr}, v{vXr}, v4"); A.I(f"v_lshlrev_b32 v{vXr}, 4, v{vXr}")
    A.I(f"v_and_b32 v4, 31, v1"); A.I(f"v_lshl_add_u32 v{vXr}, v4, 8, v{vXr}"); A.I(f"v_add_u32 v{vXr}, s{sU}, v{vXr}")
    def xchunk(c):
        A.I(f"s_lshl_b32 s{sT}, s{sTT}, 15"); A.I(f"s_add_u32 s{sT}, s{sT}, {256*c}")
        for m in range(8):
            A.I(f"s_add_u32 m0, s{sU}, {8192*c + 1024*m}")
            A.I(f"v_xor_b32 v{vTmp+(m&1)}, {((4*m) & 15) << 4}, v{vXb}")
            A.VM(f"buffer_load_dwordx4 v{vTmp+(m&1)}, {SR(R_AX)}, s{sT} offen lds", f"xc{c}")
            A.I(f"s_add_u32 s{sT}, s{sT}, 4096")
    def xreads(c):
        A.wait_vm(f"xc{c}")
        for k in range(8):
            A.I(f"v_xor_b32 v{vTmp+(k&1)}, {k << 5}, v{vXr}")
            n = 8*c + k
            A.I(f"ds_read_b128 v[{vX+4*n}:{vX+4*n+3}], v{vTmp+(k&1)} offset:{8192*c}")
    def stats(c):
        A.I("s_waitcnt lgkmcnt(0)")
        for n in range(8*c, 8*c+8):
            for q in range(4):
                A.I(f"v_dot2c_f32_bf16 v{vSum}, v{vX+4*n+q}, v{vOne}")
                A.I(f"v_dot2c_f32_bf16 v{vSum+1}, v{vX+4*n+q}, v{vX+4*n+q}")
    W = qkv_w_feeder(A, [12288*g for g in range(8)], raw=True)
    xchunk(0)
    stamp(A, "q0_iss")
    setup2(A)
    if P['t0'] == 3: w_touch()
    xchunk(1)
    code_touch()
    if P['t0'] == 4: w_touch()
    A.I(f"s_cmp_lg_u32 s{S_W}, 0"); A.I("s_cbranch_scc1 q0_nz")
    A.I("v_mul_u32_u24 v4, 43, v1"); A.I("v_lshrrev_b32 v4, 8, v4")
    A.I("v_mul_u32_u24 v5, 6, v4"); A.I("v_sub_u32 v5, v1, v5")
    A.I(f"s_mov_b32 s84, {LSTR:#x}"); A.I("v_mul_lo_u32 v4, v4, s84"); A.I("v_lshl_add_u32 v4, v5, 10, v4")
    A.I("v_mov_b32 v5, 0")
    A.I("s_lshl_b32 s84, s2, 2"); A.I(f"s_add_u32 s84, s84, {FLG:#x}")
    A.I("s_mov_b64 exec, 0xfff")
    A.I(f"buffer_store_dword v5, v4, {WSR}, s84 offen sc0 sc1")
    A.I("s_mov_b64 exec, -1")
    A.L("q0_nz")
    lane_consts(A)
    A.I(f"v_lshrrev_b32 v4, 5, v1"); A.I(f"v_lshl_add_u32 v{vTr0}, v4, 8, v{V_T64}"); A.I(f"v_add_u32 v{vTr1}, 49152, v{vTr0}")
    A.I(f"v_mov_b32 v{vOne}, 0x3f803f80"); A.I(f"v_mov_b32 v{vSum}, 0"); A.I(f"v_mov_b32 v{vSum+1}, 0")
    for q in range(4): A.I(f"v_mov_b32 v{vOnes+q}, 0x3f803f80")
    for q in range(48): A.I(f"v_accvgpr_write_b32 a{q}, 0")
    xreads(0)
    stamp(A, "q0_x0")
    xchunk(2)
    if P['t0'] == 2: w_touch()
    stats(0)
    xreads(1); xchunk(3)
    if P['t0'] == 1: w_touch()
    stats(1)
    xreads(2)
    A.I(f"s_cmp_lg_u32 s{S_W}, 0"); A.I("s_cbranch_scc1 q0_na")
    A.I(f"s_lshl_b32 s{sT}, s{S_XCC}, 5"); A.I(f"v_mov_b32 v{V_RANK}, 1"); A.I("s_mov_b64 exec, 1")
    A.I(f"buffer_atomic_add v{V_RANK}, off, {SR(R_DBG)}, s{sT} sc0 sc1")
    A.I("s_mov_b64 exec, -1")
    A.L("q0_na")
    W.emit(6); stats(2)
    xreads(3); A.I("s_waitcnt lgkmcnt(0)"); A.I("s_barrier")
    stamp(A, "q0_x3")
    W.emit(9); stats(3);
    def reads(n):
        b = vTr0 if n < 16 else vTr1
        o = (n % 16) * 3072; p = vW + 12*(n & 1)
        return [(f"ds_read_b64_tr_b16 v[{p+4*q+2*hh}:{p+4*q+2*hh+1}], v{b} offset:{o+1024*q+256*hh}", f"k{n}q{q}") for q in range(3) for hh in range(2)]
    def late_touch():
        A.I(f"s_lshl_b32 s{sO}, s2, 2"); A.I(f"s_add_u32 s{sO}, s{sO}, s{S_W}"); A.I(f"s_mul_i32 s{sO}, s{sO}, 1376")
        A.I("s_mov_b64 exec, 0xfff")
        A.VM(f"buffer_load_dword a64, v{V_LN}, {SR(R_G)}, s{sO} offen", "warm"); A.VM(f"buffer_load_dword a66, v{V_LN}, {SR(R_U)}, s{sO} offen", "warm")
        A.I("s_mov_b32 exec_lo, 0x1ffffff")
        A.I("v_lshlrev_b32 v4, 20, v1")
        if P['tlb']: A.VM(f"buffer_load_dword a67, v4, {WSR}, 0 offen", "warm")
        A.I("s_mov_b64 exec, -1")
    SCR = XST
    V = ilist(A, stats_fin_list(vSum, vMean, vRstd, vMF, vTmp) + rstd_tr_list(SCR + 4096, vRstd, vRT0, vTmp, sT) + [f"v_mul_f32 v{vTmp+5}, {f32bits(0.25*LOG2E):#x}, v{vRstd}"])
    SY = {0: 1, 8: 3, 16: 5, 24: 7}
    A.wait_vm("wq1"); A.I("s_barrier")
    stamp(A, "q0_w0")
    for r in reads(0): A.LD(*r)
    for n in range(32):
        if n + 1 in SY: A.wait_vm(f"wq{SY[n+1]}"); A.I("s_barrier")
        nx = reads(n+1) if n + 1 < 32 else []
        p = vW + 12*(n & 1); x = v(vX+4*n, 4)
        for q in range(3):
            A.wait_lg(f"k{n}q{q}")
            c = "0" if n == 0 else None
            if q < 2: mfma(A, v((vQ, vK)[q],16), v(p+4*q,4), x, c)
            else: mfma(A, v(vV,16), x, v(p+8,4), c)
            for r in nx[2*q:2*q+2]: A.LD(*r)
            if q == 0 and len(W): W.emit(1)
            if n >= 10: V.emit(1)
            if n == 9 and q == 0: late_touch()
        lab = A.label("q0cs")
        A.I(f"s_cmp_lg_u32 s{S_W}, {n & 3}"); A.I(f"s_cbranch_scc1 {lab}")
        for q in range(3): mfma(A, a(16*q,16), v(vOnes,4), v(p+4*q,4))
        A.L(lab)
    stamp(A, "q0_loop")
    assert not len(V)
    A.I(f"v_lshlrev_b32 v4, 5, v1"); A.I("s_mov_b64 exec, 0xff")
    A.I(f"buffer_load_dword v3, v4, {SR(R_DBG)}, 0 offen sc0 sc1")
    A.I("s_mov_b64 exec, -1")
    A.I(f"s_lshr_b32 s{sT}, s{S_W}, 1"); A.I(f"s_lshl_b32 s{sT}, s{sT}, 9"); A.I(f"s_and_b32 s{sO}, s{S_W}, 1"); A.I(f"s_lshl_b32 s{sO}, s{sO}, 3")
    A.I(f"s_add_u32 s88, s{sT}, s{sO}")
    A.I(f"s_add_u32 s{sT}, s88, {SCR}")
    A.I(f"v_and_b32 v{vTmp+4}, 0x1ff, v2"); A.I(f"v_add_u32 v{vTmp+4}, s{sT}, v{vTmp+4}")
    def split(src, d):
        A.I(f"v_cvt_pk_bf16_f32 v{d}, v{src}, v{src}"); A.I(f"v_and_b32 v{d+1}, 0xffff0000, v{d}")
        A.I(f"v_sub_f32 v{d+1}, v{src}, v{d+1}"); A.I(f"v_cvt_pk_bf16_f32 v{d+1}, v{d+1}, v{d+1}")
    for q in range(3):
        A.I(f"v_accvgpr_read_b32 v{vTmp}, a{16*q}")
        split(vTmp, vW+2*q)
        A.I(f"ds_write_b64 v{vTmp+4}, v[{vW+2*q}:{vW+2*q+1}] offset:{1024*q}")
    A.I("s_waitcnt lgkmcnt(0)"); A.I("s_barrier")
    A.I(f"v_add_u32 v{vTmp}, {SCR}, v2")
    for q in range(3): A.I(f"ds_read_b128 v[{vCS+4*q}:{vCS+4*q+3}], v{vTmp} offset:{1024*q}")
    qkv_out_addr(A, sO, sJ, sTT, sT)
    A.I("s_waitcnt lgkmcnt(0)")
    mfma(A, v(vK,16), v(vCS+4,4), v(vMF,4)); mfma(A, v(vV,16), v(vMF,4), v(vCS+8,4)); mfma(A, v(vQ,16), v(vCS,4), v(vMF,4))
    A.I(f"s_or_b32 s{sT}, s{sI}, s{S_W}"); A.I(f"s_cmp_lg_u32 s{sT}, 0"); A.I("s_cbranch_scc1 q0_nocs")
    A.I(f"s_lshl_b32 s{sT}, s{sJ}, 10"); A.I(f"s_add_u32 s{sT}, s{sT}, {CSQ:#x}")
    for q in range(3):
        A.I(f"buffer_store_dwordx4 v[{vCS+4*q}:{vCS+4*q+3}], v2, {WSR}, s{sT} offen sc1"); A.I(f"s_add_u32 s{sT}, s{sT}, 16384")
    A.L("q0_nocs")
    A.nop(8)
    L = fin_list(vK, lambda i: vRstd, vW, [f"buffer_store_dwordx4 v[{vW+4*h}:{vW+4*h+3}], v{V_KA}, {WSR}, s{sO+1+h} offen sc1" for h in range(2)])
    L += fin_list(vV, lambda i: vRT+i, vW+8, [f"buffer_store_dwordx4 v[{vW+8+4*h}:{vW+8+4*h+3}], v{V_VA}, {WSR}, s{sO+1} offen offset:{512*h} sc1" for h in range(2)])
    L += fin_list(vQ, lambda i: vTmp+5, vW+16, [f"buffer_store_dwordx4 v[{vW+16+4*h}:{vW+16+4*h+3}], v2, {WSR}, s{sO} offen offset:{1024*h} sc1" for h in range(2)])
    ilist(A, L).flush()
    stamp(A, "q0_stored")
    A.I("s_waitcnt vmcnt(0)"); A.vm = []
    A.I(f"s_cmp_lg_u32 s{S_W}, 0"); A.I("s_cbranch_scc1 q0_nr")
    A.I(f"v_mov_b32 v{vTmp}, {QK_SCR}"); A.I("s_mov_b64 exec, 1"); A.I(f"ds_write_b32 v{vTmp}, v{V_RANK}"); A.I("s_mov_b64 exec, -1")
    A.I("s_waitcnt lgkmcnt(0)")
    A.L("q0_nr")
    A.I("s_barrier")
    A.I(f"s_lshl_b32 s{sT}, s{sJ}, 4"); A.I(f"s_add_u32 s{sT}, s{sT}, s{sI}")
    A.I(f"v_mov_b32 v{vTmp}, {QK_SCR}"); A.I(f"ds_read_b32 v{V_RANK}, v{vTmp}")
    A.I(f"s_mov_b32 s{S_SPIN}, 0")
    A.I("s_mov_b64 exec, 0xff")
    A.I("s_branch q0_pc2")
    A.L("q0_pc")
    A.I(f"buffer_load_dword v3, v4, {SR(R_DBG)}, 0 offen sc0 sc1")
    A.I(f"s_add_u32 s{S_SPIN}, s{S_SPIN}, 1"); A.I(f"s_cmp_gt_u32 s{S_SPIN}, 0x80000"); A.I("s_cbranch_scc1 L_abort")
    A.L("q0_pc2")
    A.I("s_waitcnt vmcnt(0) lgkmcnt(0)")
    A.I("v_cmp_eq_u32 vcc, 32, v3")
    A.I("v_readlane_b32 s84, v3, 0")
    for l in range(1, 8):
        A.I(f"v_readlane_b32 s85, v3, {l}"); A.nop(1); A.I("s_add_u32 s84, s84, s85")
    A.I("s_cmp_lg_u32 s84, 256"); A.I("s_cbranch_scc1 q0_pc")
    A.I("s_mov_b64 exec, -1")
    post_store(A, F_QKV, sT, " sc0 sc1")
    stamp(A, "q0_posted")
    if P['rfgap']: rf_loads(A)
    A.I("s_cmp_eq_u32 vcc_lo, 0xff"); A.I("s_cbranch_scc0 G_att")
    if P['force_g']: A.I("s_branch G_att")
    A.I(f"v_readfirstlane_b32 s{S_R}, v{V_RANK}"); A.I(f"s_mov_b32 s{S_X}, s{S_XCC}")
    A.nop(4)
    A.I("s_branch L_att")

def x_feeder(A, sXo, n, tag="x"):
    X = Feeder(A)
    for i in range(n):
        def f(i=i):
            A.VM(f"buffer_load_dwordx4 a[{4*i}:{4*i+3}], v2, {WSR}, s{sXo} offen offset:{1024*(i%4)}{LD}", f"x{i}")
            if i % 4 == 3: A.I(f"s_add_u32 s{sXo}, s{sXo}, 4096")
        X.add(f)
    return X

def ph_qkv(A):
    sI, sJ, sTT, sXo, sT, sO = 70, 71, 72, 73, 74, 75
    vB, vST, vCS, vMF, vMean, vRstd, vTmp = 4, 8, 24, 36, 40, 41, 42
    vW, vQ, vK, vV, vRT, vO = 48, 72, 88, 104, 120, 136
    coords_ij(A, sI, sJ)
    A.I(f"s_lshl_b32 s{sTT}, s{sI}, 2"); A.I(f"s_add_u32 s{sTT}, s{sTT}, s{S_W}")
    A.I(f"s_lshl_b32 s{sXo}, s{sTT}, 15"); A.I(f"s_add_u32 s{sXo}, s{sXo}, {XB:#x}")
    mk_windows(A, vB, V_T64)
    A.I(f"s_lshl_b32 s{sT}, s{sJ}, 10"); A.I(f"s_add_u32 s{sT}, s{sT}, {CSQ:#x}")
    for q in range(3):
        A.VM(f"buffer_load_dwordx4 v[{vCS+4*q}:{vCS+4*q+3}], v2, {WSR}, s{sT} offen{LD}", "cs"); A.I(f"s_add_u32 s{sT}, s{sT}, 16384")
    qkv_out_addr(A, sO, sJ, sTT, sT)
    A.I(f"s_lshl_b32 s{sT}, s{sI}, 4")
    poll(A, F_DN - LSTR, sT, 16)
    stamp(A, "qkv_polled")
    A.I("s_barrier")
    A.I(f"s_lshl_b32 s{sT}, s{sTT}, 12"); A.I(f"s_add_u32 s{sT}, s{sT}, {STX:#x}")
    X = x_feeder(A, sXo, 32)
    X.emit(6); stats_load(A, vST, sT); X.emit(2)
    def rd(n, q, p):
        k, o = win(QK_GRP[n//4] + (n % 4)*3072)
        return [(f"ds_read_b64_tr_b16 v[{p+2*hh}:{p+2*hh+1}], v{vB+k} offset:{o+1024*q+512*hh}", f"k{n}q{q}") for hh in range(2)]
    seq = [(n, q) for n in range(32) for q in (1, 2)] + [(n, 0) for n in range(32)]
    DEP = 4
    for j in range(DEP - 1):
        for r in rd(*seq[j], vW + 4*(j % DEP)): A.LD(*r)
    V = ilist(A, stats_reduce_list(vST) + stats_fin_list(vST, vMean, vRstd, vMF, vTmp) + rstd_tr_list(QK_SCR, vRstd, vRT, vTmp, sT)
              + [f"v_mul_f32 v{vTmp}, {f32bits(0.25*LOG2E):#x}, v{vRstd}"])
    E = ilist(A, fin_list(vK, lambda i: vRstd, vO, [f"buffer_store_dwordx4 v[{vO+4*h}:{vO+4*h+3}], v{V_KA}, {WSR}, s{sO+1+h} offen sc1" for h in range(2)])
              + fin_list(vV, lambda i: vRT+i, vO+8, [f"buffer_store_dwordx4 v[{vO+8+4*h}:{vO+8+4*h+3}], v{V_VA}, {WSR}, s{sO+1} offen offset:{512*h} sc1" for h in range(2)]))
    for j, (n, q) in enumerate(seq):
        p = vW + 4*(j % DEP); x = a(4*n, 4)
        if j < 64 and q == 1:
            A.wait_vm(f"x{n}")
            if n == 0: stamp(A, "qkv_x0")
        if j == 64:
            mfma(A, v(vK,16), v(vCS+4,4), v(vMF,4)); mfma(A, v(vV,16), v(vMF,4), v(vCS+8,4))
        A.wait_lg(f"k{n}q{q}")
        c = "0" if n == 0 else None
        if q == 0: mfma(A, v(vQ,16), v(p,4), x, c)
        elif q == 1: mfma(A, v(vK,16), v(p,4), x, c)
        else: mfma(A, v(vV,16), x, v(p,4), c)
        if j + DEP - 1 < len(seq):
            for r in rd(*seq[j+DEP-1], vW + 4*((j+DEP-1) % DEP)): A.LD(*r)
        if q == 1: X.emit(1)
        if 16 <= j < 64: V.emit(2)
        if j >= 68: E.emit(2)
    assert not len(V) and not len(X) and not len(E), (len(V), len(E))
    mfma(A, v(vQ,16), v(vCS,4), v(vMF,4))
    stamp(A, "qkv_loop")
    A.I(f"s_lshl_b32 s{sT}, s{sJ}, 4"); A.I(f"s_add_u32 s{sT}, s{sT}, s{sI}")
    A.nop(10)
    ilist(A, fin_list(vQ, lambda i: vTmp, vO+16, [f"buffer_store_dwordx4 v[{vO+16+4*h}:{vO+16+4*h+3}], v2, {WSR}, s{sO} offen offset:{1024*h}{STL()}" for h in range(2)])).flush()
    stamp(A, "qkv_stored")
    post_flag(A, F_QKV, sT, " sc0 sc1")
    stamp(A, "qkv_posted")

def rf_loads(A):
    R = 92; sQ, sStrip = 80, 81
    nojob = A.label('nojob')
    A.I("s_mov_b32 s91, 0")
    A.I("s_cmp_ge_u32 s2, 172"); A.I("s_cselect_b32 s84, 1, 0"); A.I(f"s_lshr_b32 s85, s{S_W}, 1"); A.I("s_or_b32 s84, s84, s85")
    A.I("s_cmp_lg_u32 s84, 0"); A.I("s_cbranch_scc1 " + nojob)
    A.I(f"s_lshr_b32 s{sStrip}, s2, 1"); A.I(f"s_and_b32 s{sQ}, s2, 1"); A.I(f"s_lshl_b32 s{sQ}, s{sQ}, 1"); A.I(f"s_add_u32 s{sQ}, s{sQ}, s{S_W}")
    A.I(f"s_cmp_ge_u32 s{sStrip}, 43")
    A.I(f"s_cselect_b32 s{R}, s{P_U}, s{P_G}"); A.I(f"s_cselect_b32 s{R+1}, s{P_U+1}, s{P_G+1}"); A.I(f"s_cselect_b32 s85, 43, 0")
    A.I(f"s_and_b32 s{R+1}, s{R+1}, 0xffff"); A.I(f"s_mov_b32 s{R+2}, {512*1376*2:#x}"); A.I(f"s_mov_b32 s{R+3}, 0x20000")
    A.I(f"s_sub_u32 s{sStrip}, s{sStrip}, s85")
    A.I(f"s_mul_i32 s86, s{sQ}, {128*2752}"); A.I(f"s_lshl_b32 s87, s{sStrip}, 6"); A.I("s_add_u32 s86, s86, s87")
    A.I(f"s_lshl_b32 s84, s{S_W}, 13")
    for m in range(8):
        A.I(f"s_add_u32 m0, s84, {JOB_LDS + 1024*m}"); A.nop(1)
        A.I(f"buffer_load_dwordx4 v{V_DG}, {SR(R)}, s86 offen lds")
        A.I(f"s_add_u32 s86, s86, {16*2752}")
    A.I(f"s_lshl_b32 s91, s{sStrip}, 11"); A.I(f"s_add_u32 s91, s91, {CSG:#x}")
    A.I(f"s_lshr_b32 s87, s{sQ}, 1"); A.I("s_lshl_b32 s87, s87, 9"); A.I("s_add_u32 s91, s91, s87")
    A.I(f"s_and_b32 s87, s{sQ}, 1"); A.I("s_lshl_b32 s87, s87, 3"); A.I("s_add_u32 s91, s91, s87")
    A.I("s_cmp_lg_u32 s85, 0"); A.I("s_cselect_b32 s87, 256, 0"); A.I("s_add_u32 s91, s91, s87")
    A.L(nojob)
    RFV = 160
    A.I(f"s_lshl_b32 s80, s2, 2"); A.I(f"s_add_u32 s80, s80, s{S_W}")
    A.I(f"s_bitcmp1_b32 s{S_W}, 0")
    A.I(f"s_cselect_b32 s{R}, s{P_U}, s{P_G}"); A.I(f"s_cselect_b32 s{R+1}, s{P_U+1}, s{P_G+1}"); A.I("s_cselect_b32 s81, 32, 0")
    A.I(f"s_and_b32 s{R+1}, s{R+1}, 0xffff"); A.I(f"s_mov_b32 s{R+2}, {512*1376*2:#x}"); A.I(f"s_mov_b32 s{R+3}, 0x20000")
    A.I(f"v_xor_b32 v150, s81, v{V_DG}")
    for k in range(3):
        A.I(f"s_add_u32 s84, s80, {1024*k}")
        A.I("s_lshr_b32 s85, s84, 6"); A.I("s_lshl_b32 s85, s85, 6")
        A.I("s_bfe_u32 s96, s84, 0x50001"); A.I(f"s_mul_i32 s96, s96, {16*2752}"); A.I("s_add_u32 s85, s85, s96")
        A.I(f"s_lshl_b32 s{86+k}, s84, 10"); A.I(f"s_add_u32 s{86+k}, s{86+k}, {WFG:#x}")
        if k == 2:
            A.I("s_cmp_ge_u32 s84, 2752"); A.I("s_cselect_b32 s85, 0xf0000000, s85"); A.I(f"s_cselect_b32 s{86+k}, 0xf0000000, s{86+k}")
        A.I(f"buffer_load_dwordx4 v[{RFV+4*k}:{RFV+4*k+3}], v150, {SR(R)}, s85 offen")
    for k in range(2):
        if k == 0: A.I("s_mov_b32 s84, s80")
        else: A.I("s_add_u32 s84, s80, 512")
        A.I("s_mul_i32 s85, s84, 683"); A.I("s_lshr_b32 s85, s85, 16")
        A.I("s_mul_i32 s96, s85, 96"); A.I("s_sub_u32 s96, s84, s96")
        A.I("s_mul_i32 s97, s96, 171"); A.I("s_lshr_b32 s97, s97, 9")
        A.I("s_mul_i32 s8, s97, 3"); A.I("s_sub_u32 s96, s96, s8")
        A.I("s_lshl_b32 s85, s85, 6"); A.I("s_lshl_b32 s96, s96, 10"); A.I("s_add_u32 s85, s85, s96")
        A.I("s_mul_i32 s97, s97, 49152"); A.I("s_add_u32 s85, s85, s97")
        A.I(f"s_lshl_b32 s{89+k}, s84, 10")
        if k == 1:
            A.I("s_cmp_lt_u32 s80, 512"); A.I("s_cselect_b32 s85, 0xf0000000, s85"); A.I(f"s_cselect_b32 s{89+k}, 0xf0000000, s{89+k}")
        A.I(f"buffer_load_dwordx4 v[{RFV+12+4*k}:{RFV+12+4*k+3}], v{V_DQ}, {SR(R_WQKV)}, s85 offen")

def touch_regs(A):
    t, t2 = 148, 149
    sA, sB, sC, sD = 92, 93, 94, 95
    coords_tc(A, sA, sB)
    A.I(f"s_lshl_b32 s{sA}, s{sA}, 1"); A.I(f"s_and_b32 s{sC}, s{S_W}, 1"); A.I(f"s_add_u32 s{sA}, s{sA}, s{sC}")
    A.I(f"s_lshl_b32 s{sC}, s{sA}, 12"); A.I(f"s_lshl_b32 s{sD}, s{sB}, 9"); A.I(f"s_add_u32 s{sC}, s{sC}, s{sD}")
    A.I(f"s_lshl_b32 s{sA}, s{sA}, 15"); A.I(f"s_lshl_b32 s{sB}, s{sB}, 12"); A.I(f"s_add_u32 s{sA}, s{sA}, s{sB}")
    A.I(f"s_lshr_b32 s{sB}, s{S_W}, 1"); A.I(f"s_lshl_b32 s{sB}, s{sB}, 11"); A.I(f"s_add_u32 s{sA}, s{sA}, s{sB}")
    A.I(f"v_and_b32 v{t}, 15, v1"); A.I(f"v_lshlrev_b32 v{t}, 7, v{t}")
    def sel(dst, lo, hi, base_s, extra, mask=None):
        A.I(f"s_add_u32 s97, s{base_s}, {(extra - lo*128) & M32:#x}")
        m = ((1 << hi) - (1 << lo))
        A.I(f"s_mov_b32 exec_lo, {m & M32:#x}"); A.I(f"s_mov_b32 exec_hi, {m >> 32:#x}")
        A.I(f"v_add_u32 v{dst}, s97, v{V_LN}")
        A.I("s_mov_b64 exec, -1")
    A.I(f"s_lshl_b32 s{sB}, s{S_X}, 18"); A.I(f"s_lshl_b32 s{sD}, s{S_W}, 16"); A.I(f"s_add_u32 s{sB}, s{sB}, s{sD}")
    A.I(f"s_lshl_b32 s{sD}, s{S_R}, 10"); A.I(f"s_add_u32 s{sB}, s{sB}, s{sD}")
    A.I(f"s_add_u32 s97, s{sB}, {OF:#x}"); A.I(f"v_mov_b32 v{V_TA}, s97")
    sel(V_TA, 0, 8, sB, OF); sel(V_TA, 8, 16, sB, OF + 32768); sel(V_TA, 16, 32, sA, XB); sel(V_TA, 32, 36, sC, STX)
    coords_ij(A, sA, sB)
    A.I(f"s_lshl_b32 s{sA}, s{sA}, 2"); A.I(f"s_add_u32 s{sA}, s{sA}, s{S_W}")
    A.I(f"s_lshl_b32 s{sB}, s{sB}, 11"); A.I(f"s_lshl_b32 s{sC}, s{sA}, 15"); A.I(f"s_add_u32 s{sB}, s{sB}, s{sC}")
    A.I(f"s_add_u32 s97, s{sB}, {OF:#x}"); A.I(f"v_mov_b32 v{V_TC}, s97")
    sel(V_TC, 0, 16, sB, OF)
    A.I("s_mov_b32 exec_lo, 0x00ff0000"); A.I("s_mov_b32 exec_hi, 0")
    A.I(f"v_lshlrev_b32 v{V_TC}, 19, v1"); A.I(f"v_add_u32 v{V_TC}, {(KV + KVS - (16 << 19)) & M32:#x}, v{V_TC}")
    A.I("s_mov_b64 exec, -1")
    gu_u0(A, sB)
    A.I(f"s_mul_i32 s{sA}, s{sA}, 86"); A.I(f"s_add_u32 s{sA}, s{sA}, s{sB}"); A.I(f"s_lshl_b32 s{sA}, s{sA}, 10")
    A.I(f"s_add_u32 s97, s{sA}, {HF:#x}"); A.I(f"v_mov_b32 v{V_TB}, s97")
    sel(V_TB, 0, 48, sA, HF)
def pretouch(A, reg, areg, track=True):
    ins = f"buffer_load_dword a{areg}, v{reg}, {WSR}, 0 offen sc1"
    if not P['pret']: return
    if track: A.VM(ins, "warm")
    else: A.I(ins)

TB = 2080
def ph_attn(A, pre, Wgu):
    sH, sQB, sT, sK, sM, sIt, sEnd, sPh, sRot, sO, sSy = 70, 71, 72, 73, 74, 75, 76, 77, 78, 79, 82
    sWa = 83
    sQO = 76
    sEnd, sPh = 92, 93
    QA, QB_, idx, aK, aVa, aVb = 4, 8, 36, 37, 38, 39
    Kr = [12, 16]; VAr = [20, 28]; VBr = [24, 32]
    SA, SB, OA, OB, CA, CB = 40, 56, 72, 88, 104, 120
    tmp = 136
    bK, bVa, bVb = tmp+8, tmp+9, tmp+10
    A.L(pre + "_att")
    A.I(f"s_mov_b32 s{sH}, s{S_R}"); A.I(f"s_mov_b32 s{sQB}, s{S_X}")
    for i in range(4): A.I(f"v_mov_b32 v{tmp+i}, 0x3f803f80")
    A.I(f"v_mul_u32_u24 v{tmp+4}, {TB}, v1")
    A.I(f"ds_write_b128 v{tmp+4}, v[{tmp}:{tmp+3}] offset:2048")
    for i in range(4): A.I(f"v_mov_b32 v{SA+i}, 0")
    A.I(f"ds_write_b128 v{tmp+4}, v[{SA}:{SA+3}] offset:2064")
    A.I(f"v_mov_b32 v{idx}, 0xdddddddd"); A.I(f"v_mov_b32 v{bK}, v2")
    A.I(f"v_and_b32 v{bVa}, 0xffff, v{V_VA}"); A.I(f"v_add_u32 v{bVb}, 512, v{bVa}")
    A.I(f"v_and_b32 v{tmp+5}, 27, v1"); A.I(f"v_cmp_ne_u32 vcc, 16, v{tmp+5}"); A.I(f"v_mov_b32 v{tmp+6}, 2048"); A.I(f"v_mov_b32 v{tmp+7}, 2064")
    A.I(f"v_and_b32 v{tmp+5}, 16, v1"); A.I(f"v_cndmask_b32 v{tmp+6}, v{tmp+6}, v{tmp+7}, vcc"); A.I(f"v_cmp_ne_u32 vcc, 0, v{tmp+5}")
    A.nop(2)
    A.I(f"v_cndmask_b32 v{bVa}, v{bVa}, v{tmp+6}, vcc"); A.I(f"v_cndmask_b32 v{bVb}, v{bVb}, v{tmp+6}, vcc")
    A.I(f"s_lshl_b32 s{sK}, s{sH}, 17"); A.I(f"s_lshl_b32 s{sT}, s{S_L}, 22"); A.I(f"s_add_u32 s{sK}, s{sK}, s{sT}"); A.I(f"s_add_u32 s{sK}, s{sK}, {KV:#x}")
    A.I(f"s_add_u32 s12, s{R_WS}, s{sK}"); A.I(f"s_addc_u32 s13, s{R_WS+1}, 0"); A.I("s_mov_b32 s14, 131072"); A.I("s_mov_b32 s15, 0x20000")
    A.I(f"s_lshl_b32 s{sO}, s{sQB}, 18"); A.I(f"s_lshl_b32 s{sT}, s{S_W}, 16"); A.I(f"s_add_u32 s{sO}, s{sO}, s{sT}")
    A.I(f"s_lshl_b32 s{sT}, s{sH}, 10"); A.I(f"s_add_u32 s{sO}, s{sO}, s{sT}"); A.I(f"s_add_u32 s{sQO}, s{sO}, {OF:#x}"); A.I(f"s_add_u32 s{sQO+1}, s{sQO}, 32768")
    A.I(f"s_lshl_b32 s{sRot}, s{sQB}, 3"); A.I(f"s_add_u32 s{sRot}, s{sRot}, s{S_W}"); A.I(f"s_lshl_b32 s{sRot}, s{sRot}, 11")
    A.I(f"s_mul_i32 s{sM}, s{S_W}, {TB}")
    A.I(f"s_mul_i32 s{sWa}, s{S_R}, 44032"); A.I(f"s_mul_i32 s{sT}, s{S_W}, 11264"); A.I(f"s_add_u32 s{sWa}, s{sWa}, s{sT}")
    def init():
        A.I(f"v_mov_b32 v{aK}, v{bK}"); A.I(f"v_mov_b32 v{aVa}, v{bVa}"); A.I(f"v_mov_b32 v{aVb}, v{bVb}")
        for i in range(32): A.I(f"v_mov_b32 v{OA+i}, 0")
        for i in range(8): A.I(f"v_mov_b32 v{SB+8+i}, 0")
        for i in range(4): A.I(f"v_mov_b32 v{VBr[1]+i}, 0")
    init()
    A.I(f"s_lshr_b32 s{sT}, s{sH}, 1"); A.I(f"s_lshl_b32 s{sT}, s{sT}, 4")
    A.I(f"s_lshl_b32 s{sSy}, s{sT}, 2"); A.I(f"s_add_u32 s{sSy}, s{sSy}, s{S_LB}"); A.I(f"s_add_u32 s{sSy}, s{sSy}, {F_QKV:#x}")
    A.I(f"s_lshl_b32 s{sIt}, s{S_X}, 1"); A.I(f"s_add_u32 s{sT}, s{sT}, s{sIt}")
    A.I(f"v_and_b32 v{CB}, 60, v{V_FL}")
    A.I("s_waitcnt lgkmcnt(0)")
    poll(A, F_QKV, sT, 2)
    stamp(A, "att_polled")
    A.VM(f"buffer_load_dwordx4 v[{QA}:{QA+3}], v2, {WSR}, s{sQO} offen{LD}", "q")
    def kv_round(tag):
        def fk():
            A.I(f"s_mov_b32 m0, s{sM}"); A.I(f"s_add_u32 s{sM}, s{sM}, {4*TB}")
            A.VM(f"buffer_load_dwordx4 v2, s[12:15], s{sRot} offen{LD} lds", tag)
        def fv():
            A.VM(f"buffer_load_dwordx4 v2, s[12:15], s{sRot} offen offset:1024{LD} lds", tag)
            A.I(f"s_add_u32 s{sRot}, s{sRot}, 8192"); A.I(f"s_and_b32 s{sRot}, s{sRot}, 0x1ffff")
        return [fk, fv]
    def feed(fs):
        F = Feeder(A)
        for f in fs: F.add(f)
        return F
    feed(kv_round("r0")).flush()
    A.VM(f"buffer_load_dwordx4 v[{QB_}:{QB_+3}], v2, {WSR}, s{sQO+1} offen{LD}", "r0")
    feed(kv_round("r1")).flush()
    A.VM(f"buffer_load_dword v{CA}, v{CB}, {WSR}, s{sSy} offen sc0 sc1", "pf")
    if not P['rfgap']:
        lab = A.label("norl")
        A.I("s_mov_b32 s91, 0")
        A.I(f"s_cmp_lg_u32 s{S_L}, 0"); A.I(f"s_cbranch_scc1 {lab}")
        rf_loads(A)
        A.L(lab)
    def wait_cls(n):
        if P['rfgap']:
            A.I(f"s_waitcnt vmcnt({n})"); return
        lab = A.label("wc")
        A.I(f"s_waitcnt vmcnt({n+13})"); A.I("s_cmp_lg_u32 s91, 0"); A.I(f"s_cbranch_scc1 {lab}")
        A.I(f"s_waitcnt vmcnt({n+5})"); A.I(f"s_cmp_eq_u32 s{S_L}, 0"); A.I(f"s_cbranch_scc1 {lab}")
        A.I(f"s_waitcnt vmcnt({n})")
        A.L(lab)
    loopa, loopb, back, done = pre + "_aloopa", pre + "_aloopb", pre + "_aback", pre + "_adone"
    def first():
        A.I(f"ds_read_b128 v[{Kr[0]}:{Kr[0]+3}], v{aK}"); A.I(f"ds_read_b128 v[{VAr[0]}:{VAr[0]+3}], v{aVa}"); A.I(f"ds_read_b128 v[{VBr[0]}:{VBr[0]+3}], v{aVb}")
        A.I("s_waitcnt lgkmcnt(0)")
        mfma(A, v(SA,16), v(Kr[0],4), v(QA,4), "0")
        A.nop(12)
    U = 4
    def ex(S, i): A.I(f"v_exp_f32 v{S+i}, v{S+i}")
    def smf(O, Vr, Pp): A.I(f"v_smfmac_f32_32x32x32_bf16 v[{O}:{O+15}], v[{Vr}:{Vr+3}], v[{Pp}:{Pp+7}], v{idx}")
    def body(F, end, slots=(0, 1, 2), hook=None):
        def fe(k):
            if F and k in slots: F.emit(1)
        for u in range(U):
            p = u & 1; q = p ^ 1; last = (u == U-1)
            if hook: hook(u)
            ex(SA,0); ex(SA,1)
            smf(OB, VBr[q], SB+8)
            A.I(f"ds_read_b128 v[{Kr[q]}:{Kr[q]+3}], v{aK} offset:{TB*(u+1)}")
            ex(SA,2); ex(SA,3); ex(SA,4)
            mfma(A, v(SB,16), v(Kr[p],4), v(QB_,4), "0")
            A.I(f"ds_read_b128 v[{VAr[q]}:{VAr[q]+3}], v{aVa} offset:{TB*(u+1)}")
            for i in range(5, 10): ex(SA, i)
            smf(OA, VAr[p], SA)
            A.I(f"ds_read_b128 v[{VBr[q]}:{VBr[q]+3}], v{aVb} offset:{TB*(u+1)}")
            for i in range(10, 16): ex(SA, i)
            ex(SB,0); ex(SB,1)
            smf(OA, VBr[p], SA+8)
            fe(0)
            A.I("s_waitcnt lgkmcnt(0)")
            ex(SB,2); ex(SB,3); ex(SB,4)
            mfma(A, v(SA,16), v(Kr[q],4), v(QA,4), "0")
            fe(1)
            for i in range(5, 10): ex(SB, i)
            smf(OB, VAr[p], SB)
            fe(2)
            if last:
                if end: A.I(f"s_add_u32 s{sIt}, s{sIt}, 1"); A.I(f"s_cmp_lt_u32 s{sIt}, {end}")
                A.I(f"v_add_u32 v{aK}, {TB*U}, v{aK}"); A.I(f"v_add_u32 v{aVa}, {TB*U}, v{aVa}"); A.I(f"v_add_u32 v{aVb}, {TB*U}, v{aVb}")
            for i in range(10, 16): ex(SB, i)
        assert not F or not len(F)
    wait_cls(3); A.I("s_barrier")
    stamp(A, "att_first")
    first()
    def h0(u):
        if u == 1:
            lab, lab2, lab3 = A.label("kvpoll"), A.label("kvok"), A.label("kvchk")
            A.I(f"s_mov_b32 s{S_SPIN}, 0")
            wait_cls(0); A.vm = []
            A.I(f"s_branch {lab3}")
            A.L(lab)
            A.I("s_waitcnt vmcnt(0)")
            A.L(lab3)
            A.I(f"v_cmp_ne_u32 vcc, 1, v{CA}")
            A.I(f"s_add_u32 s{S_SPIN}, s{S_SPIN}, 1"); A.I(f"s_cmp_gt_u32 s{S_SPIN}, 0x80000"); A.I("s_cbranch_scc1 L_abort")
            A.nop(2)
            A.I(f"s_cbranch_vccz {lab2}")
            A.I(f"buffer_load_dword v{CA}, v{CB}, {WSR}, s{sSy} offen sc0 sc1")
            A.I(f"s_branch {lab}")
            A.L(lab2)
            A.I("s_barrier")
            stamp(A, "att_all")
    F0 = feed([lambda: None, lambda: None] + kv_round("r2") + kv_round("r3") + [lambda: None, lambda: None])
    body(F0, None, slots=(1, 2), hook=h0)
    def h1(u):
        if u == 3: A.wait_vm("r3"); A.I("s_barrier")
    body(feed(kv_round("r4") + kv_round("r5") + kv_round("r6") + kv_round("r7")), None, slots=(1, 2), hook=h1)
    stamp(A, "a_it2")
    lab = A.label("norf")
    A.I(f"s_cmp_lg_u32 s{S_L}, 0"); A.I(f"s_cbranch_scc1 {lab}")
    for k in range(5): A.I(f"buffer_store_dwordx4 v[{160+4*k}:{163+4*k}], v2, {WSR}, s{86+k} offen sc1")
    A.I("s_cmp_eq_u32 s91, 0"); A.I(f"s_cbranch_scc1 {lab}")
    J = 180
    A.I(f"s_lshl_b32 s{sT}, s{S_W}, 13"); A.I(f"s_add_u32 s{sT}, s{sT}, {JOB_LDS}"); A.I(f"v_add_u32 v{tmp+4}, s{sT}, v{V_T64}")
    for m in range(8):
        A.I(f"ds_read_b64_tr_b16 v[{J+4*m}:{J+4*m+1}], v{tmp+4} offset:{1024*m}")
        A.I(f"ds_read_b64_tr_b16 v[{J+4*m+2}:{J+4*m+3}], v{tmp+4} offset:{1024*m+512}")
        if m == 3: A.I("s_waitcnt lgkmcnt(0)")
    A.I("s_waitcnt lgkmcnt(0)")
    for m in range(8): mfma(A, v(J+32,16), v(tmp,4), v(J+4*m,4), "0" if m == 0 else None)
    A.I(f"v_bfe_u32 v{tmp+4}, v1, 4, 1"); A.I(f"v_lshlrev_b32 v{tmp+4}, 10, v{tmp+4}"); A.I(f"v_and_b32 v{tmp+5}, 15, v1"); A.I(f"v_lshl_add_u32 v{tmp+4}, v{tmp+5}, 4, v{tmp+4}")
    A.nop(10)
    A.I(f"v_cvt_pk_bf16_f32 v{J}, v{J+32}, v{J+32}"); A.I(f"v_and_b32 v{J+1}, 0xffff0000, v{J}")
    A.I(f"v_sub_f32 v{J+1}, v{J+32}, v{J+1}"); A.I(f"v_cvt_pk_bf16_f32 v{J+1}, v{J+1}, v{J+1}")
    A.I("s_mov_b32 exec_hi, 0")
    A.I(f"buffer_store_dwordx2 v[{J}:{J+1}], v{tmp+4}, {WSR}, s91 offen sc1")
    A.I("s_mov_b32 exec_hi, -1")
    A.L(lab)
    body(feed(kv_round("r8") + kv_round("r9")), None, slots=(1,))
    A.wait_vm("r7"); A.I("s_barrier")
    post_store(A, F_RF, 2, " sc0 sc1")
    A.I(f"s_mov_b32 s{sIt}, 3")
    A.I(".p2align 6")
    A.L(loopa)
    body(feed(kv_round("rx") + kv_round("rx")), 6, slots=(1,))
    A.I(f"s_cbranch_scc1 {loopa}")
    stamp(A, "a_it6")
    A.vm = []
    A.I(f"s_mov_b32 s{sO}, {F_RF:#x}")
    body(feed([lambda: A.I(f"buffer_load_dwordx4 v[{CA}:{CA+3}], v2, {WSR}, s{sO} offen sc0 sc1")]), None, slots=(1,))
    lab, lab2 = A.label("rfpoll"), A.label("rfok")
    A.I(f"s_mov_b32 s{S_SPIN}, 0")
    A.L(lab)
    A.I("s_waitcnt vmcnt(0)")
    A.I(f"v_and_b32 v{CA}, v{CA}, v{CA+1}"); A.I(f"v_and_b32 v{CA+2}, v{CA+2}, v{CA+3}"); A.I(f"v_and_b32 v{CA}, v{CA}, v{CA+2}")
    A.I(f"v_cmp_ne_u32 vcc, 1, v{CA}")
    A.I(f"s_add_u32 s{S_SPIN}, s{S_SPIN}, 1"); A.I(f"s_cmp_gt_u32 s{S_SPIN}, 0x80000"); A.I("s_cbranch_scc1 L_abort")
    A.nop(2)
    A.I(f"s_cbranch_vccz {lab2}")
    A.I(f"buffer_load_dwordx4 v[{CA}:{CA+3}], v2, {WSR}, s{sO} offen sc0 sc1")
    A.I(f"s_branch {lab}")
    A.L(lab2)
    A.I("s_barrier")
    stamp(A, "a_it7")
    lab = A.label("nores")
    A.I(f"s_cmp_lg_u32 s{S_L}, 0"); A.I(f"s_cbranch_scc1 {lab}")
    coords_tc(A, sT, sO)
    A.I(f"s_lshl_b32 s{sT}, s{sT}, 1"); A.I(f"s_and_b32 s{sM}, s{S_W}, 1"); A.I(f"s_add_u32 s{sT}, s{sT}, s{sM}"); A.I(f"s_lshl_b32 s{sT}, s{sT}, 15")
    A.I(f"s_lshl_b32 s{sO}, s{sO}, 1"); A.I(f"s_lshr_b32 s{sM}, s{S_W}, 1"); A.I(f"s_add_u32 s{sO}, s{sO}, s{sM}"); A.I(f"s_lshl_b32 s{sO}, s{sO}, 6")
    A.I(f"s_add_u32 s{sT}, s{sT}, s{sO}")
    for i in range(4): A.I(f"buffer_load_dwordx2 v[{V_RES+2*i}:{V_RES+1+2*i}], v{V_ROW}, {SR(R_AX)}, s{sT} offen offset:{16*i}")
    A.I(f"s_lshl_b32 s{sIt}, s{S_R}, 3"); A.I(f"s_add_u32 s{sIt}, s{sIt}, s{S_X}"); A.I(f"s_lshl_b32 s{sIt}, s{sIt}, 2"); A.I(f"s_add_u32 s{sIt}, s{sIt}, s{S_W}")
    A.I(f"s_mul_i32 s{sM}, s{sIt}, 1376"); A.I(f"s_mul_i32 s{sIt}, s{sIt}, 1536")
    A.I("s_mov_b64 exec, 0xfff"); A.I(f"buffer_load_dword a4, v{V_LN}, {SR(R_D)}, s{sM} offen")
    A.I(f"buffer_load_dword a7, v{V_LN}, {WSR}, s{sIt} offen sc1")
    A.I("s_mov_b64 exec, -1")
    touch_regs(A)
    A.L(lab)
    A.I(f"s_lshl_b32 s{sWa}, s{sWa}, 1"); A.I(f"s_add_u32 s{sWa}, s{sWa}, {WFG:#x}")
    A.I(f"v_add_u32 v{CA+3}, s{sWa}, v{V_LN}"); A.I(f"v_add_u32 v{CA}, 8192, v{CA+3}"); A.I(f"v_add_u32 v{CA+1}, 14336, v{CA+3}")
    A.I(f"s_lshl_b32 s{sO}, s{S_R}, 14"); A.I(f"s_lshl_b32 s{sM}, s{S_W}, 12"); A.I(f"s_add_u32 s{sO}, s{sO}, s{sM}")
    def wo_t():
        A.I("s_mov_b32 exec_hi, 0"); A.I(f"buffer_load_dword a5, v{V_LN}, {SR(R_WO)}, s{sO} offen"); A.I("s_mov_b32 exec_hi, -1")
    body(feed([wo_t, lambda: None, lambda: pretouch(A, CA+3, 6, False)]), None, slots=(1,))
    stamp(A, "a_it8")
    A.I(f"s_mov_b32 s{sIt}, 8"); A.I(f"v_mov_b32 v{CA+2}, v{V_TA}")
    A.I(".p2align 6")
    A.L(loopb)
    def rot():
        pretouch(A, CA, 6, False); A.I(f"v_mov_b32 v{CA}, v{CA+1}"); A.I(f"v_mov_b32 v{CA+1}, v{CA+2}"); A.I(f"v_mov_b32 v{CA+2}, v{V_TB}")
    body(feed([rot]), 12, slots=(1,))
    A.I(f"s_cbranch_scc1 {loopb}")
    A.I("s_barrier")
    stamp(A, "a_it12")
    Wwo = res_w_feeder(A, 'wo')
    F = Feeder(A)
    for _ in range(16): F.add(lambda: Wwo.emit(1))
    for _ in range(10): F.add(lambda: Wgu.emit(1))
    for it in range(4):
        G = Feeder(A); G.q = F.q[:8]; F.q = F.q[8:]
        body(G, None, slots=(1, 2))
    A.nop(2)
    smf(OB, VBr[(U-1)&1], SB+8)
    stamp(A, "att_loop")
    A.I(f"s_mov_b32 s{sEnd}, {f32bits(2.0**-24):#x}"); A.I(f"s_mov_b32 s{sPh}, {f32bits(2.0**64):#x}")
    A.nop(11)
    fin, slow = pre + "_afin", pre + "_aslow"
    A.I(f"v_cmp_le_f32 s[86:87], s{sEnd}, v{OA+8}"); A.I(f"v_cmp_ge_f32 s[88:89], s{sPh}, v{OA+8}")
    A.I(f"v_cmp_le_f32 s[94:95], s{sEnd}, v{OB+8}"); A.I(f"v_cmp_ge_f32 vcc, s{sPh}, v{OB+8}")
    A.I(f"v_rcp_f32 v{tmp}, v{OA+8}"); A.I(f"v_rcp_f32 v{tmp+1}, v{OB+8}")
    A.I("s_and_b64 s[86:87], s[86:87], s[88:89]"); A.I("s_and_b64 s[94:95], s[94:95], vcc"); A.I("s_and_b64 s[86:87], s[86:87], s[94:95]")
    A.I("s_cmp_eq_u64 s[86:87], exec"); A.I(f"s_cbranch_scc0 {slow}")
    A.L(fin)
    for X, (O, so) in enumerate(((OA, sQO), (OB, sQO+1))):
        for i in range(8): A.I(f"v_mul_f32 v{O+i}, v{O+i}, v{tmp+X}")
        for i in range(4): A.I(f"v_cvt_pk_bf16_f32 v{SA+4*X+i}, v{O+2*i}, v{O+2*i+1}")
        A.VM(f"buffer_store_dwordx4 v[{SA+4*X}:{SA+4*X+3}], v2, {WSR}, s{so} offen{STL()}", "st")
    stamp(A, "att_stored")
    A.I(f"s_lshl_b32 s{sT}, s{sQB}, 5"); A.I(f"s_add_u32 s{sT}, s{sT}, s{sH}")
    post_flag(A, F_ATT, sT, FLL())
    stamp(A, "att_posted")
    O = Asm()
    O.L(slow)
    mA, mB, sC, sA = tmp, tmp+1, sRot, sM
    O.I(f"v_mov_b32 v{mA}, 0xff800000"); O.I(f"v_mov_b32 v{mB}, 0xff800000")
    O.I(f"s_mov_b32 s{sC}, 0"); O.I(f"s_mov_b32 s{sA}, 0")
    O.L(f"{slow}_mx")
    O.I(f"buffer_load_dwordx4 v[{Kr[0]}:{Kr[0]+3}], v2, s[12:15], s{sA} offen{LD}")
    O.I(f"s_add_u32 s{sA}, s{sA}, 2048"); O.I("s_waitcnt vmcnt(0)")
    mfma(O, v(SA,16), v(Kr[0],4), v(QA,4), "0"); mfma(O, v(SB,16), v(Kr[0],4), v(QB_,4), "0")
    O.nop(16)
    for i in range(8): O.I(f"v_max3_f32 v{mA}, v{SA+2*i}, v{SA+2*i+1}, v{mA}")
    for i in range(8): O.I(f"v_max3_f32 v{mB}, v{SB+2*i}, v{SB+2*i+1}, v{mB}")
    O.I(f"s_add_u32 s{sC}, s{sC}, 1"); O.I(f"s_cmp_lt_u32 s{sC}, 64"); O.I(f"s_cbranch_scc1 {slow}_mx")
    for m, Cc in ((mA, CA), (mB, CB)):
        O.I(f"v_mov_b32 v{tmp+2}, v{m}"); O.nop(2)
        O.I(f"v_permlane32_swap_b32 v{m}, v{tmp+2}"); O.nop(1)
        O.I(f"v_max_f32 v{m}, v{m}, v{tmp+2}")
        for i in range(16): O.I(f"v_sub_f32 v{Cc+i}, 0, v{m}")
    for i in range(32): O.I(f"v_mov_b32 v{OA+i}, 0")
    for i in range(8): O.I(f"v_mov_b32 v{VAr[0]+i}, 0x3f803f80")
    O.I(f"v_and_b32 v{tmp+2}, 0xffff, v{V_VA}")
    O.I(f"s_mov_b32 s{sC}, 0"); O.I(f"s_mov_b32 s{sA}, 0")
    O.L(f"{slow}_pv")
    O.I(f"buffer_load_dwordx4 v[{Kr[0]}:{Kr[0]+3}], v2, s[12:15], s{sA} offen{LD}")
    O.I("s_mov_b32 exec_lo, 0xffff"); O.I("s_mov_b32 exec_hi, 0xffff")
    O.I(f"buffer_load_dwordx4 v[{VAr[0]}:{VAr[0]+3}], v{tmp+2}, s[12:15], s{sA} offen{LD}")
    O.I(f"buffer_load_dwordx4 v[{VBr[0]}:{VBr[0]+3}], v{tmp+2}, s[12:15], s{sA} offen offset:512{LD}")
    O.I("s_mov_b64 exec, -1")
    O.I(f"s_add_u32 s{sA}, s{sA}, 2048"); O.I("s_waitcnt vmcnt(0)")
    mfma(O, v(SA,16), v(Kr[0],4), v(QA,4), v(CA,16)); mfma(O, v(SB,16), v(Kr[0],4), v(QB_,4), v(CB,16))
    O.nop(16)
    for i in range(32): O.I(f"v_exp_f32 v{SA+i}, v{SA+i}")
    O.nop(2)
    for Oo, S in ((OA, SA), (OB, SB)):
        O.I(f"v_smfmac_f32_32x32x32_bf16 v[{Oo}:{Oo+15}], v[{VAr[0]}:{VAr[0]+3}], v[{S}:{S+7}], v{idx}")
        O.I(f"v_smfmac_f32_32x32x32_bf16 v[{Oo}:{Oo+15}], v[{VBr[0]}:{VBr[0]+3}], v[{S+8}:{S+15}], v{idx}")
    O.nop(8)
    O.I(f"s_add_u32 s{sC}, s{sC}, 1"); O.I(f"s_cmp_lt_u32 s{sC}, 64"); O.I(f"s_cbranch_scc1 {slow}_pv")
    O.nop(16)
    O.I(f"v_rcp_f32 v{tmp}, v{OA+8}"); O.I(f"v_rcp_f32 v{tmp+1}, v{OB+8}"); O.nop(1)
    O.I(f"s_branch {fin}")
    return O

def ph_res(A, kind, W, sched, pre, after_x=None):
    KH = 16 if kind == 'wo' else 43
    KS = 2*KH
    SRC, DST, STO, BLK, EX = (OF, XB, STX, WO_BLK, WO_EX) if kind == 'wo' else (HF, XB, STX, DN_BLK, DN_EX)
    sTp, sC, sKh, sTT, sAo, sT, sCt, sR, sSt = 70, 71, 72, 73, 74, 75, 76, 77, 78
    vB, vW, acc0, acc1, vTmp = 4, 12, 36, 52, 68
    coords_tc(A, sTp, sC)
    A.I(f"s_lshr_b32 s{sKh}, s{S_W}, 1")
    A.I(f"s_lshl_b32 s{sTT}, s{sTp}, 1"); A.I(f"s_and_b32 s{sT}, s{S_W}, 1"); A.I(f"s_add_u32 s{sTT}, s{sTT}, s{sT}")
    A.I(f"s_mul_i32 s{sAo}, s{sTT}, {KS*1024}"); A.I(f"s_mul_i32 s{sT}, s{sKh}, {KH*1024}"); A.I(f"s_add_u32 s{sAo}, s{sAo}, s{sT}")
    A.I(f"s_add_u32 s{sAo}, s{sAo}, {SRC:#x}")
    A.I(f"s_lshl_b32 s{sCt}, s{sC}, 1"); A.I(f"s_add_u32 s{sCt}, s{sCt}, s{sKh}")
    A.I(f"s_lshl_b32 s{sR}, s{sTT}, 15"); A.I(f"s_lshl_b32 s{sT}, s{sCt}, 11"); A.I(f"s_add_u32 s{sR}, s{sR}, s{sT}")
    A.I(f"s_add_u32 s{sR}, s{sR}, {DST:#x}")
    A.I(f"s_lshl_b32 s{sSt}, s{sTT}, 12"); A.I(f"s_add_u32 s{sSt}, s{sSt}, {STO:#x}")
    A.I(f"s_lshl_b32 s{sT}, s{sC}, 9"); A.I(f"s_add_u32 s{sSt}, s{sSt}, s{sT}"); A.I(f"s_lshl_b32 s{sT}, s{sKh}, 3"); A.I(f"s_add_u32 s{sSt}, s{sSt}, s{sT}")
    A.I(f"s_lshl_b32 s{sT}, s{sKh}, 6"); A.I(f"v_xor_b32 v{vB}, s{sT}, v{V_T128}")
    A.I(f"s_lshl_b32 s{sT}, s{sKh}, 11"); A.I(f"v_add_u32 v{vB}, s{sT}, v{vB}"); A.I(f"v_xor_b32 v{vB+1}, 64, v{vB}")
    mk_windows(A, vB, vB, 3, 2); mk_windows(A, vB+1, vB+1, 3, 2)
    A.I(f"s_lshl_b32 s{sT}, s{S_W}, 12"); A.I(f"s_add_u32 s{sT}, s{sT}, {EX}")
    A.I(f"v_add_u32 v{vTmp}, s{sT}, v2"); A.I(f"s_xor_b32 s{sT}, s{S_W}, 2"); A.I(f"s_lshl_b32 s{sT}, s{sT}, 12"); A.I(f"s_add_u32 s{sT}, s{sT}, {EX}")
    A.I(f"v_add_u32 v{vTmp+1}, s{sT}, v2")
    for i in range(8):
        A.I(f"v_lshlrev_b32 v{acc0+2*i}, 16, v{V_RES+i}"); A.I(f"v_and_b32 v{acc0+2*i+1}, 0xffff0000, v{V_RES+i}")
    if kind == 'wo':
        A.I(f"s_lshl_b32 s{sT}, s{S_X}, 5"); poll(A, F_ATT, sT, 32)
    else:
        A.I(f"s_lshr_b32 s{sT}, s{sTp}, 1"); A.I(f"s_lshl_b32 s{sT}, s{sT}, 4"); poll(A, F_GU, sT, 15)
    stamp(A, kind + "_polled")
    A.I("s_barrier")
    X = x_feeder(A, sAo, KH)
    X.emit(12)
    def rd(i, q, p):
        k, o = win(BLK[i])
        return [(f"ds_read_b64_tr_b16 v[{p+2*hh}:{p+2*hh+1}], v{vB+2*k+q} offset:{o+1024*hh}", f"k{i}q{q}") for hh in range(2)]
    seq = [(i, q) for i in range(KH) for q in range(2)]
    DEP = 4
    for j in range(DEP-1):
        for r in rd(*seq[j], vW + 4*(j % DEP)): A.LD(*r)
    for j, (i, q) in enumerate(seq):
        if q == 0:
            if kind == 'dn' and i in (12, 31): stamp(A, f"dn_i{i}")
            sched(i, -1, X)
            A.wait_vm(f"x{i}")
            if i == 0: stamp(A, kind + "_x0")
        A.wait_lg(f"k{i}q{q}")
        mfma(A, v((acc0, acc1)[q],16), v(vW + 4*(j % DEP),4), a(4*i,4), "0" if (i == 0 and q == 1) else None)
        if j + DEP - 1 < len(seq):
            for r in rd(*seq[j+DEP-1], vW + 4*((j+DEP-1) % DEP)): A.LD(*r)
        sched(i, q, X)
    assert not len(W) and not len(X), (len(W), len(X))
    stamp(A, kind + "_loop")
    A.I(f"s_lshl_b32 s{sT}, s{sTp}, 3"); A.I(f"s_add_u32 s{sT}, s{sT}, s{sC}")
    A.nop(10)
    for q in range(4): A.I(f"ds_write_b128 v{vTmp}, v[{acc1+4*q}:{acc1+4*q+3}] offset:{1024*q}")
    A.I("s_waitcnt lgkmcnt(0)"); A.I("s_barrier")
    for q in range(4): A.I(f"ds_read_b128 v[{acc1+4*q}:{acc1+4*q+3}], v{vTmp+1} offset:{1024*q}")
    if after_x: after_x()
    for q in range(4):
        A.I(f"s_waitcnt lgkmcnt({3-q})")
        for i in (0, 2): A.I(f"v_pk_add_f32 v[{acc0+4*q+i}:{acc0+4*q+i+1}], v[{acc0+4*q+i}:{acc0+4*q+i+1}], v[{acc1+4*q+i}:{acc1+4*q+i+1}]")
        for i in (0, 1): A.I(f"v_cvt_pk_bf16_f32 v{V_RES+2*q+i}, v{acc0+4*q+2*i}, v{acc0+4*q+2*i+1}")
        if kind == 'dn' and q == 1: A.I(f"s_cmp_eq_u32 s{S_L}, 1"); A.I(f"s_cbranch_scc1 {pre}_final")
        if q & 1: A.VM(f"buffer_store_dwordx4 v[{V_RES+2*q-2}:{V_RES+2*q+1}], v2, {WSR}, s{sR} offen offset:{1024*(q>>1)}{STL()}", "st")
    sm, sq = vTmp+2, vTmp+4
    A.I(f"v_pk_add_f32 v[{sm}:{sm+1}], v[{acc0}:{acc0+1}], v[{acc0+2}:{acc0+3}]")
    A.I(f"v_pk_mul_f32 v[{sq}:{sq+1}], v[{acc0}:{acc0+1}], v[{acc0}:{acc0+1}]")
    A.I(f"v_pk_fma_f32 v[{sq}:{sq+1}], v[{acc0+2}:{acc0+3}], v[{acc0+2}:{acc0+3}], v[{sq}:{sq+1}]")
    for i in range(4, 16, 2):
        A.I(f"v_pk_add_f32 v[{sm}:{sm+1}], v[{sm}:{sm+1}], v[{acc0+i}:{acc0+i+1}]")
        A.I(f"v_pk_fma_f32 v[{sq}:{sq+1}], v[{acc0+i}:{acc0+i+1}], v[{acc0+i}:{acc0+i+1}], v[{sq}:{sq+1}]")
    A.I(f"v_add_f32 v{sm}, v{sm}, v{sm+1}"); A.I(f"v_add_f32 v{sm+1}, v{sq}, v{sq+1}")
    A.I(f"v_mov_b32 v{sq}, v{sm}"); A.I(f"v_mov_b32 v{sq+1}, v{sm+1}"); A.nop(1)
    A.I(f"v_permlane32_swap_b32 v{sm}, v{sq}"); A.I(f"v_permlane32_swap_b32 v{sm+1}, v{sq+1}")
    A.I(f"v_pk_add_f32 v[{sm}:{sm+1}], v[{sm}:{sm+1}], v[{sq}:{sq+1}]")
    A.I("s_mov_b32 exec_hi, 0")
    A.VM(f"buffer_store_dwordx2 v[{sm}:{sm+1}], v2, {WSR}, s{sSt} offen{STL()}", "st")
    A.I("s_mov_b32 exec_hi, -1")
    stamp(A, kind + "_stored")
    return sT

def final_store(A, pre):
    sTT, sCt, sT, sR, acc0, acc1, vTmp = 73, 76, 75, 77, 36, 52, 68
    A.L(pre + "_final")
    for q in (2, 3):
        A.I(f"s_waitcnt lgkmcnt({3-q})")
        for i in (0, 2): A.I(f"v_pk_add_f32 v[{acc0+4*q+i}:{acc0+4*q+i+1}], v[{acc0+4*q+i}:{acc0+4*q+i+1}], v[{acc1+4*q+i}:{acc1+4*q+i+1}]")
        for i in (0, 1): A.I(f"v_cvt_pk_bf16_f32 v{V_RES+2*q+i}, v{acc0+4*q+2*i}, v{acc0+4*q+2*i+1}")
    A.I(f"v_lshrrev_b32 v{vTmp+1}, 5, v1"); A.I(f"v_lshl_add_u32 v{vTmp}, v{vTmp+1}, 3, v{V_ROW}")
    A.I(f"s_lshl_b32 s{sT}, s{sTT}, 15"); A.I(f"s_lshl_b32 s{sR}, s{sCt}, 6"); A.I(f"s_add_u32 s{sT}, s{sT}, s{sR}")
    for b in (0, 4):
        A.I(f"v_permlane32_swap_b32 v{V_RES+b}, v{V_RES+b+2}"); A.I(f"v_permlane32_swap_b32 v{V_RES+b+1}, v{V_RES+b+3}")
        A.I(f"buffer_store_dwordx4 v[{V_RES+b}:{V_RES+b+3}], v{vTmp}, {SR(R_OUT)}, s{sT} offen offset:{8*b}")
    if INSTR:
        A.I("s_waitcnt vmcnt(0)")
        stamp(A, "end")
        A.I("s_memrealtime s[98:99]"); A.I("s_waitcnt lgkmcnt(0)")
        A.I("v_writelane_b32 v236, s98, 63"); A.I("v_writelane_b32 v236, s101, 62")
        A.I(f"s_lshl_b32 s98, s{S_R}, 3"); A.I(f"s_add_u32 s98, s98, s{S_X}"); A.I(f"s_lshl_b32 s98, s98, 2"); A.I(f"s_add_u32 s98, s98, s{S_W}"); A.I("s_lshl_b32 s98, s98, 9"); A.I(f"s_add_u32 s98, s98, {DBGO:#x}")
        A.I(f"buffer_store_dword v235, v{V_FL}, {WSR}, s98 offen")
        A.I(f"buffer_store_dword v236, v{V_FL}, {WSR}, s98 offen offset:256")
    A.I("s_endpgm")

def ph_gu(A, W, Wdn):
    sI, sG, sU0, sTT, sXo, sT, sH, sDup, sWa = 70, 71, 72, 73, 74, 75, 76, 77, 78
    vB, vST, vCS, vMF, vMean, vRstd, vTmp, vW, vO, acc = 4, 12, 28, 52, 56, 57, 58, 64, 80, 112
    coords_ij(A, sI, sG); gu_u0(A, sU0)
    A.I(f"s_lshl_b32 s{sTT}, s{sI}, 2"); A.I(f"s_add_u32 s{sTT}, s{sTT}, s{S_W}")
    A.I(f"s_lshl_b32 s{sXo}, s{sTT}, 15"); A.I(f"s_add_u32 s{sXo}, s{sXo}, {XB:#x}")
    A.I(f"v_bfe_u32 v{vTmp}, v1, 4, 1"); A.I(f"v_lshl_add_u32 v{vB}, v{vTmp}, 10, v{V_T64}"); A.I(f"v_xor_b32 v{vB+1}, 32, v{vB}")
    mk_windows(A, vB, vB, 3, 2); mk_windows(A, vB+1, vB+1, 3, 2)
    A.I(f"s_lshl_b32 s{sT}, s{sU0}, 10"); A.I(f"s_add_u32 s{sT}, s{sT}, {CSG:#x}")
    for u in range(6):
        if u == 4: A.I(f"s_add_u32 s{sT}, s{sT}, 4096")
        A.VM(f"buffer_load_dwordx4 v[{vCS+4*u}:{vCS+4*u+3}], v2, {WSR}, s{sT} offen offset:{1024*(u%4)}{LD}", "cs")
    A.I(f"s_mul_i32 s{sH}, s{sTT}, 86"); A.I(f"s_add_u32 s{sH}, s{sH}, s{sU0}"); A.I(f"s_lshl_b32 s{sH}, s{sH}, 10")
    A.I(f"s_add_u32 s{sH}, s{sH}, {HF:#x}")
    A.I(f"s_mul_i32 s{sDup}, s{sG}, 6"); A.I(f"s_sub_u32 s{sDup}, s{sDup}, s{sU0}")
    A.I(f"s_mul_i32 s{sWa}, s{S_R}, 49152"); A.I(f"s_mul_i32 s{sT}, s{S_W}, 12288"); A.I(f"s_add_u32 s{sWa}, s{sWa}, s{sT}")
    A.I(f"s_mul_i32 s{sWa+1}, s{S_R}, 44032"); A.I(f"s_mul_i32 s{sT}, s{S_W}, 11264"); A.I(f"s_add_u32 s{sWa+1}, s{sWa+1}, s{sT}")
    pre_groups = W.n // 2
    A.I(f"s_lshl_b32 s{sT}, s{sI}, 4")
    poll(A, F_WO, sT, 16)
    stamp(A, "gu_polled")
    A.I("s_barrier")
    A.I(f"s_lshl_b32 s{sT}, s{sTT}, 12"); A.I(f"s_add_u32 s{sT}, s{sT}, {STX:#x}")
    X = x_feeder(A, sXo, 32)
    X.emit(6); stats_load(A, vST, sT); X.emit(2)
    def rd(n, q, p):
        k, o = win(GU_GRP[n//4] + (n % 4)*2048)
        return [(f"ds_read_b64_tr_b16 v[{p+2*hh}:{p+2*hh+1}], v{vB+2*k+q} offset:{o+512*hh}", f"k{n}q{q}") for hh in range(2)]
    seq = [(n, q) for n in range(96) for q in range(2)]
    DEP = 4
    for j in range(DEP-1):
        for r in rd(*seq[j], vW + 4*(j % DEP)): A.LD(*r)
    V = ilist(A, stats_reduce_list(vST) + stats_fin_list(vST, vMean, vRstd, vMF, vTmp) + ["s_nop 0", f"v_mul_f32 v{vTmp}, v{vRstd}, v{vRstd}"])
    def epi(u):
        b = acc + 16*u; o = vO + 4*(u & 1)
        L = [f"v_mul_f32 v{b+i}, v{b+i}, v{vTmp}" for i in range(8)] + [f"v_mul_f32 v{b+i}, v{b+i}, v{b+8+i}" for i in range(8)]
        L += [f"v_cvt_pk_bf16_f32 v{o+i}, v{b+2*i}, v{b+2*i+1}" for i in range(4)]
        F = ilist(A, L)
        def st():
            lab = A.label("gu_skip")
            A.I(f"s_cmp_gt_u32 s{sDup}, {u}"); A.I(f"s_cbranch_scc1 {lab}")
            A.VM(f"buffer_store_dwordx4 v[{o}:{o+3}], v2, {WSR}, s{sH} offen offset:{1024*(u%4)}{STL()}", "st")
            A.L(lab)
            if u == 3: A.I(f"s_add_u32 s{sH}, s{sH}, 4096")
        F.add(st)
        return F.q
    E = Feeder(A)
    Wm = Feeder(A)
    if P['warm_gu']:
        for q in range(2):
            def f(q=q):
                A.I("s_mov_b32 exec_hi, 0xffff")
                A.VM(f"buffer_load_dword a{128+q}, v{V_LN}, {WSR}, s{sWa} offen", "warm")
                A.I("s_mov_b32 exec_hi, -1"); A.I(f"s_add_u32 s{sWa}, s{sWa}, 6144")
            Wm.add(f)
    visible = pre_groups
    for j, (n, q) in enumerate(seq):
        p_, ks = divmod(n, 32)
        jn = j + DEP - 1
        if jn < len(seq):
            gn = seq[jn][0] // 4
            if gn >= visible or (q == 0 and n in (32, 64)):
                pass
        if q == 0 and n in (16, 32, 48, 64, 80): stamp(A, f"gu_n{n}")
        if q == 0 and n in (32, 64):
            for u in (2*p_-2, 2*p_-1): mfma(A, v(acc+16*u,16), v(vCS+4*u,4), v(vMF,4))
            E.q += epi(2*p_-2) + epi(2*p_-1)
        if q == 0 and n < 32:
            A.wait_vm(f"x{n}")
            if n == 0: stamp(A, "gu_x0")
        A.wait_lg(f"k{n}q{q}")
        mfma(A, v(acc+32*p_+16*q,16), v(vW + 4*(j % DEP),4), a(4*ks,4), "0" if ks == 0 else None)
        if jn < len(seq):
            gn = seq[jn][0] // 4
            if gn >= visible:
                iss = W.n // 2
                tgt = min(iss, 19) if visible < 19 else iss
                assert tgt > gn, (n, gn, iss)
                A.wait_vm(f"wg{tgt-1}"); A.I("s_barrier"); visible = tgt
            for r in rd(*seq[jn], vW + 4*(jn % DEP)): A.LD(*r)
        if q == 1 and n in (33, 65): A.I("s_barrier")
        if n < 32:
            if q == 0: X.emit(1)
            if q == 1 and n == 24: pretouch(A, V_TB, 130)
            if n >= 25 and W.n < 38: W.emit(1)
            if n >= 8: V.emit(1 if n >= 20 else 2)
        else:
            if ks >= 3: E.emit(2)
            if q == 1 and n == 68: pretouch(A, V_TC, 131)
            if q == 0 and ks >= 2:
                if p_ == 1 and ks in (22, 27): Wm.emit(1)
                elif len(W): W.emit(1)
                elif Wdn.n < (6 if p_ == 1 else 24): Wdn.emit(1)
    assert not len(V) and not len(W) and not len(X) and not len(E) and not len(Wm) and Wdn.n == 24, (len(V), len(W), len(E), len(Wm), Wdn.n)
    for u in (4, 5): mfma(A, v(acc+16*u,16), v(vCS+4*u,4), v(vMF,4))
    stamp(A, "gu_loop")
    A.I("s_barrier")
    A.I(f"s_lshl_b32 s{sT}, s{sI}, 4"); A.I(f"s_add_u32 s{sT}, s{sT}, s{sG}")
    Wdn.emit(P['d_x'])
    A.nop(4)
    E.q += epi(4) + epi(5); E.flush()
    stamp(A, "gu_stored")
    return sT

P = dict(warm0=1, warm_att=1, warm_gu=0, force_g=0, rfgap=1, gu0=0, t0=2, tlb=0, pret=1, warm_dn=1, q_in_dn=10, g_x=4, g_pre=2, g_post=2, q_x=4, d_x=6)
def layer_code(A, pre):
    A.L(pre + "_layer")
    ph_qkv(A)
    Wgu = gu_w_feeder(A)
    O = ph_attn(A, pre, Wgu)
    Wgu.emit(20 - Wgu.n)
    W0 = Feeder(A)
    def s_wo(i, q, X):
        if q == 0 and len(X): X.emit(1)
    sT = ph_res(A, 'wo', W0, s_wo, pre, lambda: Wgu.emit(P['g_x']))
    Wgu.emit(P['g_pre'])
    post_flag(A, F_WO, sT, FLL())
    stamp(A, "wo_posted")
    Wgu.emit(P['g_post'])
    Wdn = res_w_feeder(A, 'dn')
    sT = ph_gu(A, Wgu, Wdn)
    Wdn.emit(4)
    post_flag(A, F_GU, sT, FLL())
    stamp(A, "gu_posted")
    Wdn.emit(40 - Wdn.n)
    Wq = qkv_w_feeder(A, QK_GRP)
    def s_dn(i, q, X):
        if q == -1:
            if i == 12: A.I("s_barrier")
            if i == 31: A.wait_vm("wdn42"); A.I("s_barrier")
        if q == 0: X.emit(1)
        if q == 1 and (Wdn.n < 40 or (i >= 12 and len(Wdn))): Wdn.emit(1)
        if i >= 31 and q == 1 and Wq.n < P['q_in_dn']: Wq.emit(1)
    sT = ph_res(A, 'dn', Wdn, s_dn, pre, lambda: Wq.emit(P['q_x']))
    Wq.emit(4)
    post_flag(A, F_DN, sT, FLL())
    stamp(A, "dn_posted")
    Wq.flush()
    A.I(f"s_add_u32 s{S_LB}, s{S_LB}, {LSTR:#x}"); A.I(f"s_add_u32 s{S_L}, s{S_L}, 1")
    if INSTR: A.I("v_mov_b32 v235, v236")
    A.I(f"s_branch {pre}_layer")
    final_store(A, pre)
    A.lines += O.lines

def build():
    A = Asm()
    setup(A)
    if INSTR:
        A.I("s_memrealtime s[100:101]"); A.I("s_waitcnt lgkmcnt(0)"); A.I("s_mov_b32 s101, s100"); A.I("v_mov_b32 v236, 0")
    stamp(A, "start")
    ph_qkv0(A)
    A.L("L_end"); A.L("L_abort"); A.I("s_endpgm")
    Mode.local = True; layer_code(A, "L")
    Mode.local = False; layer_code(A, "G")
    return A.text()

def main(out):
    body = build()
    name = NAME + "_kernel"
    hdr = open("cdna_kernels/" + NAME + ".s.ref").read().split("; Override launch")[0]
    txt = hdr + "; @launch grid=(256,1,1) block=(256,1,1) lds=163840\n" + '.amdgcn_target "amdgcn-amd-amdhsa--gfx950"\n'
    txt += f".text\n.globl {name}\n.p2align 8\n.type {name},@function\n{name}:\n" + body
    txt += f""".section .rodata,"a"
.p2align 6
.amdhsa_kernel {name}
  .amdhsa_next_free_vgpr 512
  .amdhsa_next_free_sgpr 102
  .amdhsa_accum_offset 256
  .amdhsa_group_segment_fixed_size 0
  .amdhsa_kernarg_size 80
  .amdhsa_user_sgpr_count 2
  .amdhsa_user_sgpr_kernarg_segment_ptr 1
  .amdhsa_system_sgpr_workgroup_id_x 1
.end_amdhsa_kernel
"""
    open(out, "w").write(txt)
    if INSTR: open(out + ".stamps", "w").write("\n".join(STN))

if __name__ == "__main__":
    INSTR = int(sys.argv[2]) if len(sys.argv) > 2 else 0
    for kv in sys.argv[3:]:
        k, val = kv.split("="); P[k] = int(val)
    main(sys.argv[1])
```

```python
import sys, math
from asmlib import *

NAME = "interleave_layers__mha_block__glu_gated_bilinear__prompt"
WFQ, WFG, CSQ, CSG, FLG, STX, OF, XB, HF, KV = 0, 0x200000, 0x4C0000, 0x4D0000, 0x4F0000, 0x500000, 0x600000, 0x800000, 0xA00000, 0x1000000
LSTR = 32768
KVS = 0x400000
F_QKV, F_ATT, F_WO, F_GU, F_DN, F_RF, F_GUE, F_GUE0 = [FLG + 4096*i for i in range(8)]
DBGO = 0x1800000
WS_USED = 0x1900000
M32 = 0xffffffff

S_W = 3
P_AX, P_WQKV, P_WO, P_BX, P_G, P_U, P_D, P_OUT, P_DBG, P_WS = 16, 18, 20, 22, 24, 26, 28, 30, 32, 34
R_WS, R_WQKV, R_WO, R_G, R_U, R_D, R_AX, R_OUT = 36, 40, 44, 48, 52, 56, 60, 64
S_LB, S_L = 68, 69
R_DBG = 4
S_SPIN, S_X, S_R, S_XCC = 8, 9, 10, 11
LOG2E = 1.4426950408889634
WSR = f"s[{R_WS}:{R_WS+3}]"
def SR(r): return f"s[{r}:{r+3}]"
V_RES = 248
V_FL, V_T64, V_T128, V_DQ, V_DR, V_DG, V_DG2, V_KA, V_VA, V_RANK, V_ROW, V_LN, V_TA, V_TB, V_TC = 247, 246, 245, 244, 243, 242, 241, 240, 239, 238, 237, 234, 233, 232, 231
V_ONE, V_F8, V_F60, V_F8W, V_PD = 229, 228, 227, 226, 224
LD = " sc1"
class Mode:
    local = True
def STL(): return "" if Mode.local else " sc1"
def FLL(): return "" if Mode.local else " sc0 sc1"

INSTR = 0
STN = []
NPL = 64
def stamp(A, name):
    if not INSTR: return
    if name not in STN: STN.append(name)
    i = STN.index(name)
    A.I("s_memrealtime s[98:99]" if INSTR == 2 else "s_memtime s[98:99]")
    A.I("s_waitcnt lgkmcnt(0)")
    A.I(f"v_writelane_b32 v236, s98, {i}")
    A.lg = []

def srd(A, r, p, nbytes):
    A.I(f"s_mov_b32 s{r}, s{p}"); A.I(f"s_and_b32 s{r+1}, s{p+1}, 0xffff")
    A.I(f"s_mov_b32 s{r+2}, {nbytes:#x}"); A.I(f"s_mov_b32 s{r+3}, 0x20000")

def mfma(A, d, x, y, c=None):
    c = d if c is None else c
    A.I(f"v_mfma_f32_32x32x16_bf16 {d}, {x}, {y}, {c}")

WIN = 61440
def win(addr): return addr // WIN, addr % WIN
def mk_windows(A, dst, src, n=3, stride=1):
    for k in range(n):
        if k == 0 and dst == src: continue
        A.I(f"v_add_u32 v{dst+stride*k}, {k*WIN}, v{src}" if k else f"v_mov_b32 v{dst}, v{src}")

class Feeder:
    def __init__(self, A): self.A = A; self.q = []; self.n = 0
    def add(self, fn): self.q.append(fn)
    def emit(self, n=1):
        for _ in range(n):
            if self.q: self.q.pop(0)(); self.n += 1
    def flush(self): self.emit(len(self.q))
    def __len__(self): return len(self.q)

def ilist(A, L):
    F = Feeder(A)
    for i in L:
        if isinstance(i, tuple):
            F.add((lambda i=i: A.LD(i[1], i[2])) if i[0] == 'ds' else (lambda i=i: A.VM(i[1], i[2])))
        else: F.add(lambda i=i: A.I(i))
    return F

def stats_load(A, dst, s_off):
    for q in range(4):
        A.VM(f"buffer_load_dwordx4 v[{dst+4*q}:{dst+4*q+3}], v2, {WSR}, s{s_off} offen offset:{1024*q}{LD}", "stats")
def stats_reduce_list(src):
    L = []
    for k in (8, 4, 2):
        for i in range(k): L.append(f"v_add_f32 v{src+i}, v{src+i}, v{src+i+k}")
    return L
def stats_fin_list(src, vmean, vrstd, mfrag, tmp):
    return [f"v_mov_b32 v{tmp}, v{src}", f"v_mov_b32 v{tmp+1}, v{src+1}", "s_nop 0",
          f"v_permlane32_swap_b32 v{src}, v{tmp}", f"v_permlane32_swap_b32 v{src+1}, v{tmp+1}",
          f"v_add_f32 v{src}, v{src}, v{tmp}", f"v_add_f32 v{src+1}, v{src+1}, v{tmp+1}",
          f"v_mul_f32 v{vmean}, {1.0/512}, v{src}", f"v_mul_f32 v{src+1}, {1.0/512}, v{src+1}",
          f"v_fma_f32 v{src+1}, -v{vmean}, v{vmean}, v{src+1}", f"v_max_f32 v{src+1}, 0, v{src+1}",
          f"v_add_f32 v{src+1}, {f32bits(1e-5):#x}, v{src+1}", f"v_rsq_f32 v{vrstd}, v{src+1}",
          f"v_sub_f32 v{tmp}, 0, v{vmean}", f"v_cvt_pk_bf16_f32 v{tmp+1}, v{tmp}, v{tmp}",
          f"v_and_b32 v{tmp+1}, 0xffff0000, v{tmp+1}", f"v_sub_f32 v{tmp+2}, v{tmp}, v{tmp+1}",
          f"v_cvt_pk_bf16_f32 v{mfrag}, v{tmp+1}, v{tmp+2}"] + [f"v_mov_b32 v{mfrag+i}, v{mfrag}" for i in (1, 2, 3)]
def rstd_tr_list(lds, vrstd, vRT, tmp, st):
    return [f"s_lshl_b32 s{st}, s{S_W}, 7", f"s_add_u32 s{st}, s{st}, {lds}",
          f"v_and_b32 v{tmp}, 31, v1", f"v_lshlrev_b32 v{tmp}, 2, v{tmp}", f"v_add_u32 v{tmp}, s{st}, v{tmp}",
          ("ds", f"ds_write_b32 v{tmp}, v{vrstd}", "rw"),
          f"v_lshrrev_b32 v{tmp+1}, 5, v1", f"v_lshlrev_b32 v{tmp+1}, 4, v{tmp+1}", f"v_add_u32 v{tmp+1}, s{st}, v{tmp+1}"] + \
         [("ds", f"ds_read_b128 v[{vRT+4*q}:{vRT+4*q+3}], v{tmp+1} offset:{32*q}", "rt") for q in range(4)]

def flag_addr(A, dst, flagbase, s_idx):
    return [f"s_lshl_b32 s{dst}, s{s_idx}, 2", f"s_add_u32 s{dst}, s{dst}, s{S_W}", f"s_lshl_b32 s{dst}, s{dst}, 2",
            f"s_add_u32 s{dst}, s{dst}, s{S_LB}", f"s_add_u32 s{dst}, s{dst}, {flagbase & M32:#x}"]
def post_wave(A, s_addr, pol, tag="st"):
    A.wait_vm(tag)
    A.I("s_mov_b64 exec, 1")
    A.VM(f"buffer_store_dword v{V_ONE}, off, {WSR}, s{s_addr}{pol}", "flag")
    A.I("s_mov_b64 exec, -1")
def post_wg(A, flagbase, pol):
    lab = A.label("nopost")
    A.I(f"s_cmp_lg_u32 s{S_W}, 0"); A.I(f"s_cbranch_scc1 {lab}")
    A.I(f"s_lshl_b32 s96, s2, 2"); A.I(f"s_add_u32 s96, s96, s{S_LB}"); A.I(f"s_add_u32 s96, s96, {flagbase & M32:#x}")
    A.I("s_mov_b64 exec, 1")
    A.I(f"buffer_store_dword v{V_ONE}, off, {WSR}, s96{pol}")
    A.I("s_mov_b64 exec, -1")
    A.L(lab)
def poll_addr(dst, flagbase, s_first):
    return [f"s_lshl_b32 s{dst}, s{s_first}, 4", f"s_add_u32 s{dst}, s{dst}, s{S_LB}", f"s_add_u32 s{dst}, s{dst}, {flagbase & M32:#x}"]
def poll_load(n, vd, s_addr):
    if n == 32: return f"buffer_load_dwordx2 v[{vd}:{vd+1}], v{V_F8}, {WSR}, s{s_addr} offen sc0 sc1"
    va = {16: V_FL, 15: V_F60, 2: V_F8W}[n]
    return f"buffer_load_dword v{vd}, v{va}, {WSR}, s{s_addr} offen sc0 sc1"
def poll_check(A, n, vd, s_addr, first_wait):
    lab, lab2, lab3 = A.label("pl"), A.label("pok"), A.label("pchk")
    A.I(f"s_mov_b32 s{S_SPIN}, 0")
    if first_wait:
        first_wait(); A.I(f"s_branch {lab3}")
    A.L(lab)
    A.I(poll_load(n, vd, s_addr))
    A.I(f"s_add_u32 s{S_SPIN}, s{S_SPIN}, 1"); A.I(f"s_cmp_gt_u32 s{S_SPIN}, 0x80000"); A.I("s_cbranch_scc1 L_abort")
    A.I("s_waitcnt vmcnt(0)")
    A.L(lab3)
    if n == 32: A.I(f"v_and_b32 v{vd}, v{vd}, v{vd+1}")
    A.I(f"v_cmp_ne_u32 vcc, 1, v{vd}")
    A.nop(4)
    A.I(f"s_cbranch_vccnz {lab}")
    if not first_wait: A.vm = []
def poll(A, flagbase, s_first, n, wsync=True):
    for i in poll_addr(96, flagbase, s_first): A.I(i)
    if wsync:
        A.I("s_waitcnt vmcnt(0) lgkmcnt(0)"); A.I(poll_load(n, V_PD, 96)); A.I("s_barrier")
        poll_check(A, n, V_PD, 96, lambda: A.I("s_waitcnt vmcnt(0)")); A.vm = []
    else:
        poll_check(A, n, V_PD, 96, None)

WO_BLK = [135168 + 4096*p for p in range(7)] + [4096*p for p in range(9)]
WO_EX = 36864
GU_GRP = [53248 + 8192*g for g in range(8)] + [118784, 126976, 135168, 143360, 151552, 0, 8192, 16384] + \
         [24576, 32768, 40960] + [53248 + 8192*g for g in range(5)]
DN_BLK = [94208 + 4096*p for p in range(6)] + [118784 + 4096*p for p in range(11)] + [4096*p for p in range(6)] + [49152] + \
         [24576 + 4096*p for p in range(6)] + [53248 + 4096*p for p in range(10)] + [94208 + 4096*p for p in range(3)]
DN_EX = 118784
QK_GRP = [0, 12288, 24576, 106496, 135168, 147456, 36864, 53248]
QK_SCR = 159744
assert len(DN_BLK) == 43 and len(GU_GRP) == 24

def coords_ij(A, sI, sJ):
    A.I(f"s_lshl_b32 s{sI}, s{S_X}, 1"); A.I(f"s_and_b32 s{sJ}, s{S_R}, 1"); A.I(f"s_add_u32 s{sI}, s{sI}, s{sJ}")
    A.I(f"s_lshr_b32 s{sJ}, s{S_R}, 1")
def coords_tc(A, sT, sC):
    A.I(f"s_lshl_b32 s{sT}, s{S_X}, 2"); A.I(f"s_and_b32 s{sC}, s{S_R}, 3"); A.I(f"s_add_u32 s{sT}, s{sT}, s{sC}")
    A.I(f"s_lshr_b32 s{sC}, s{S_R}, 2")

def qkv_w_feeder(A, grp, raw=False):
    F = Feeder(A); sO, sM = 92, 93
    for g in range(8):
        for q in range(3):
            def f(g=g, q=q):
                if g == 0 and q == 0:
                    A.I(f"s_lshr_b32 s{sO}, s{S_R}, 1")
                    if raw:
                        A.I(f"s_lshl_b32 s{sO}, s71, 6"); A.I(f"s_mul_i32 s{sM}, s{S_W}, 49152"); A.I(f"s_add_u32 s{sO}, s{sO}, s{sM}")
                        A.I(f"s_mul_i32 s{sM}, s{S_W}, 3072")
                    else:
                        A.I(f"s_mul_i32 s{sO}, s{sO}, 98304"); A.I(f"s_mul_i32 s{sM}, s{S_W}, 3072"); A.I(f"s_add_u32 s{sO}, s{sO}, s{sM}")
                        A.I(f"s_cmp_eq_u32 s{S_L}, 1"); A.I(f"s_cselect_b32 s{sO}, 0xf0000000, s{sO}")
                A.I(f"s_add_u32 m0, s{sM}, {grp[g]}")
                A.nop(1)
                if raw: A.VM(f"buffer_load_dwordx4 v{V_DQ}, {SR(R_WQKV)}, s{sO} offen offset:{1024*q} lds", f"wq{g}")
                else: A.VM(f"buffer_load_dwordx4 v2, {WSR}, s{sO} offen offset:{1024*q}{LD} lds", f"wq{g}")
                if q == 2 and g < 7: A.I(f"s_add_u32 s{sO}, s{sO}, {196608 if raw else 12288}")
            F.add(f)
    return F

def dn_unit(i):
    if i < 42: return 6*((i % 14)//2) + 2*(i//14) + i % 2
    return None
def dn_areg(i): return 128 + 4*i if i < 14 else 4*(i-14)
def res_w_feeder(A, kind):
    KH = 16 if kind == 'wo' else 43
    RW, BLK, sO, sM, sB = (R_WO, WO_BLK, 80, 81, 82) if kind == 'wo' else (R_D, DN_BLK, 88, 89, 90)
    F = Feeder(A)
    for i in range(KH):
        def f(i=i):
            if i == 0:
                A.I(f"s_lshr_b32 s{sB}, s{S_W}, 1"); A.I(f"s_mul_i32 s{sB}, s{sB}, {(16 if kind == 'wo' else 42)*16384}")
                A.I(f"s_and_b32 s{sM}, s{S_W}, 1"); A.I(f"s_lshl_b32 s{sM}, s{sM}, 13"); A.I(f"s_add_u32 s{sB}, s{sB}, s{sM}")
                A.I(f"s_lshr_b32 s{sM}, s{S_R}, 2"); A.I(f"s_lshl_b32 s{sM}, s{sM}, 7"); A.I(f"s_add_u32 s{sB}, s{sB}, s{sM}")
                A.I(f"s_lshl_b32 s{sM}, s{S_W}, 10")
            u = i if kind == 'wo' else dn_unit(i)
            if u is None:
                A.I(f"s_lshr_b32 s{sO}, s{S_W}, 1"); A.I(f"s_mul_i32 s{sO}, s{sO}, {41*16384}"); A.I(f"s_sub_u32 s{sB}, s{sB}, s{sO}"); u = 84
            if P['x_nodn'] and kind == 'dn' and i < 32: return
            A.I(f"s_add_u32 m0, s{sM}, {BLK[i]}")
            A.I(f"s_add_u32 s{sO}, s{sB}, {u*16384}")
            A.VM(f"buffer_load_dwordx4 v{V_DR}, {SR(RW)}, s{sO} offen lds", f"w{kind}{i}")
        F.add(f)
    return F

def gu_u0(A, dst):
    A.I(f"s_lshr_b32 s{dst}, s{S_R}, 1"); A.I(f"s_mul_i32 s{dst}, s{dst}, 6"); A.I(f"s_min_u32 s{dst}, s{dst}, 80")
def gu_w_feeder(A):
    F = Feeder(A); sO, sM = 84, 85
    for G in range(24):
        for m in range(2):
            def f(G=G, m=m):
                if G == 0 and m == 0:
                    gu_u0(A, sO); A.I(f"s_lshl_b32 s{sO}, s{sO}, 15"); A.I(f"s_lshl_b32 s{sM}, s{S_W}, 11")
                    A.I(f"s_add_u32 s{sO}, s{sO}, s{sM}"); A.I(f"s_add_u32 s{sO}, s{sO}, {WFG:#x}")
                A.I(f"s_add_u32 m0, s{sM}, {GU_GRP[G]}")
                A.nop(1)
                A.VM(f"buffer_load_dwordx4 v2, {WSR}, s{sO} offen offset:{1024*m}{LD} lds", f"wg{G}")
                if m == 1: A.I(f"s_add_u32 s{sO}, s{sO}, 8192")
            F.add(f)
    return F

def setup(A):
    A.I("s_cmp_ge_u32 s2, 256"); A.I("s_cbranch_scc1 L_end")
    A.I("s_load_dwordx16 s[16:31], s[0:1], 0")
    A.I("s_getpc_b64 s[12:13]")
    A.I("v_lshlrev_b32 v4, 6, v0")
    A.I("global_load_dword a64, v4, s[12:13]")
    A.I("s_load_dwordx4 s[32:35], s[0:1], 64")
    A.I("v_lshrrev_b32 v3, 6, v0"); A.I("v_and_b32 v1, 63, v0"); A.I("v_lshlrev_b32 v2, 4, v1")
    A.I(f"v_readfirstlane_b32 s{S_W}, v3")
    A.I(f"v_lshlrev_b32 v{V_FL}, 2, v1"); A.I(f"v_lshlrev_b32 v{V_LN}, 7, v1")
    for r in (V_TA, V_TB, V_TC): A.I(f"v_mov_b32 v{r}, 0")
    A.I(f"s_getreg_b32 s{S_XCC}, hwreg(HW_REG_XCC_ID, 0, 3)")
    A.I(f"s_and_b32 s{S_X}, s2, 7"); A.I(f"s_lshr_b32 s{S_R}, s2, 3")
    A.I(f"s_mov_b32 s{S_LB}, 0"); A.I(f"s_mov_b32 s{S_L}, 0")
    A.I("s_waitcnt lgkmcnt(0)")
    srd(A, R_AX, P_AX, 2048*512*2)
def setup2(A):
    for r, p, n in ((R_WQKV, P_WQKV, 512*1536*2), (R_WS, P_WS, WS_USED), (R_DBG, P_DBG, 256), (R_WO, P_WO, 512*512*2),
                    (R_G, P_G, 512*1376*2), (R_U, P_U, 512*1376*2), (R_D, P_D, 1376*512*2), (R_OUT, P_OUT, 2048*512*2)):
        srd(A, r, p, n)

def lane_consts(A):
    t = 4
    d = V_T64
    A.I(f"v_lshrrev_b32 v{d}, 5, v1"); A.I(f"v_lshlrev_b32 v{d}, 8, v{d}")
    A.I(f"v_bfe_u32 v{t}, v1, 2, 2"); A.I(f"v_lshl_add_u32 v{d}, v{t}, 6, v{d}")
    A.I(f"v_bfe_u32 v{t}, v1, 4, 1"); A.I(f"v_lshl_add_u32 v{d}, v{t}, 5, v{d}")
    A.I(f"v_and_b32 v{t}, 3, v1"); A.I(f"v_lshl_add_u32 v{d}, v{t}, 3, v{d}")
    d = V_T128
    A.I(f"v_lshrrev_b32 v{d}, 5, v1"); A.I(f"v_lshlrev_b32 v{d}, 9, v{d}")
    A.I(f"v_bfe_u32 v{t}, v1, 2, 2"); A.I(f"v_lshl_add_u32 v{d}, v{t}, 7, v{d}")
    A.I(f"v_bfe_u32 v{t}, v1, 3, 1"); A.I(f"v_lshl_add_u32 v{d}, v{t}, 6, v{d}")
    A.I(f"v_bfe_u32 v{t}, v1, 4, 1"); A.I(f"v_lshl_add_u32 v{d}, v{t}, 5, v{d}")
    A.I(f"v_and_b32 v{t}, 3, v1"); A.I(f"v_lshl_add_u32 v{d}, v{t}, 3, v{d}")
    d = V_DR
    A.I(f"v_lshrrev_b32 v{d}, 3, v1"); A.I(f"v_lshlrev_b32 v{d}, 10, v{d}")
    A.I(f"v_bfe_u32 v{t}, v1, 4, 1"); A.I(f"v_lshlrev_b32 v{t}, 2, v{t}")
    A.I(f"v_and_b32 v{t+1}, 7, v1"); A.I(f"v_xor_b32 v{t}, v{t}, v{t+1}")
    A.I(f"v_lshl_add_u32 v{d}, v{t}, 4, v{d}")
    d = V_DG
    A.I(f"v_lshrrev_b32 v{d}, 2, v1"); A.I(f"v_mul_u32_u24 v{d}, 2752, v{d}")
    A.I(f"v_and_b32 v{t}, 3, v1"); A.I(f"v_xor_b32 v{t+1}, 2, v{t}")
    A.I(f"v_lshl_add_u32 v{V_DG2}, v{t+1}, 4, v{d}"); A.I(f"v_lshl_add_u32 v{d}, v{t}, 4, v{d}")
    d = V_KA
    A.I(f"v_and_b32 v{d}, 0x33, v1")
    A.I(f"v_bfe_u32 v{t}, v1, 2, 1"); A.I(f"v_lshl_or_b32 v{d}, v{t}, 3, v{d}")
    A.I(f"v_bfe_u32 v{t}, v1, 3, 1"); A.I(f"v_lshl_or_b32 v{d}, v{t}, 2, v{d}")
    A.I(f"v_lshlrev_b32 v{d}, 4, v{d}")
    d = V_VA
    A.I(f"v_and_b32 v{d}, 15, v1"); A.I(f"v_lshlrev_b32 v{d}, 4, v{d}")
    A.I(f"v_bfe_u32 v{t}, v1, 4, 1"); A.I(f"v_lshl_or_b32 v{d}, v{t}, 17, v{d}")
    A.I(f"v_bfe_u32 v{t}, v1, 5, 1"); A.I(f"v_lshl_or_b32 v{d}, v{t}, 8, v{d}"); A.I(f"v_or_b32 v{d}, 1024, v{d}")
    A.I(f"v_mov_b32 v{V_ONE}, 1"); A.I(f"v_lshlrev_b32 v{V_F8}, 3, v1"); A.I(f"v_min_u32 v{V_F60}, 236, v{V_FL}"); A.I(f"v_and_b32 v{V_F8W}, 28, v{V_FL}")
    d = V_ROW
    A.I(f"v_and_b32 v{d}, 31, v1"); A.I(f"v_lshlrev_b32 v{d}, 10, v{d}"); A.I(f"v_lshrrev_b32 v{t}, 5, v1"); A.I(f"v_lshl_add_u32 v{d}, v{t}, 3, v{d}")

def qkv_out_addr(A, sO, sJ, sTT, sT):
    A.I(f"s_lshl_b32 s{sO}, s{sTT}, 15"); A.I(f"s_lshl_b32 s{sT}, s{sJ}, 11"); A.I(f"s_add_u32 s{sO}, s{sO}, s{sT}"); A.I(f"s_add_u32 s{sO}, s{sO}, {OF:#x}")
    A.I(f"s_lshl_b32 s{sO+1}, s{sJ}, 18"); A.I(f"s_lshl_b32 s{sT}, s{sTT}, 11"); A.I(f"s_add_u32 s{sO+1}, s{sO+1}, s{sT}")
    A.I(f"s_lshl_b32 s{sT}, s{S_L}, 22"); A.I(f"s_add_u32 s{sO+1}, s{sO+1}, s{sT}"); A.I(f"s_add_u32 s{sO+1}, s{sO+1}, {KV:#x}")
    A.I(f"s_add_u32 s{sO+2}, s{sO+1}, 131072")
def fin_list(acc, scale, out, stores):
    L = []
    for hh in range(2):
        L += [f"v_mul_f32 v{acc+i}, v{acc+i}, v{scale(i)}" for i in range(8*hh, 8*hh+8)]
        L += [f"v_cvt_pk_bf16_f32 v{out+i}, v{acc+2*i}, v{acc+2*i+1}" for i in range(4*hh, 4*hh+4)]
        L.append(("vm", stores[hh], "st"))
    return L

CODE_WINDOWS = 6
JOB_LDS = 135168
XST = 98304
def ph_qkv0(A):
    sI, sJ, sTT, sT, sO, sU, sWo, sM = 70, 71, 72, 73, 74, 79, 80, 81
    vTr0, vTr1, vXb, vXr, vTmp = 5, 6, 7, 8, 10
    vSum, vMean, vRstd, vMF, vOne = 16, 18, 19, 112, 9
    vW, vQ, vK, vV, vX = 24, 48, 64, 80, 96
    vOnes = 20
    vCS = vX; vRT = vRT0 = 144 + 0*16
    stamp(A, "q0_sld")
    def code_touch():
        A.I("s_getpc_b64 s[12:13]")
        A.I(f"s_lshl_b32 s{sT}, s{S_R}, 2"); A.I(f"s_add_u32 s{sT}, s{sT}, s{S_W}"); A.I(f"s_and_b32 s{sT}, s{sT}, 31"); A.I(f"s_lshl_b32 s{sT}, s{sT}, 11")
        A.I(f"v_add_u32 v4, s{sT}, v{V_LN}")
        A.I("s_mov_b64 exec, 0xffff")
        A.VM("global_load_dword a65, v4, s[12:13]", "warm")
        A.I("s_mov_b64 exec, -1")
    def w_touch():
        A.I("v_mul_u32_u24 v4, 43, v1"); A.I("v_lshrrev_b32 v4, 9, v4")
        A.I("v_mul_u32_u24 v3, 2048-512, v4") if False else None
        A.I(f"v_mul_u32_u24 v3, {3072 - 12*256}, v4") if False else None
        A.I("v_mul_u32_u24 v3, 12, v4"); A.I("v_sub_u32 v3, v1, v3")
        A.I("v_mul_u32_u24 v4, 3072, v4")
        A.I(f"v_lshrrev_b32 v{vTmp+2}, 2, v3"); A.I(f"v_lshl_add_u32 v4, v{vTmp+2}, 10, v4")
        A.I("v_and_b32 v3, 3, v3"); A.I("v_lshl_add_u32 v4, v3, 7, v4")
        A.I(f"s_lshl_b32 s{sT}, s{S_R}, 2"); A.I(f"s_add_u32 s{sT}, s{sT}, s{S_W}"); A.I(f"s_mul_i32 s{sT}, s{sT}, 12288")
        A.I(f"s_lshr_b32 s{sO}, s{S_X}, 2"); A.I(f"s_lshl_b32 s{sO}, s{sO}, 9"); A.I(f"s_add_u32 s{sT}, s{sT}, s{sO}")
        A.I("s_mov_b32 exec_hi, 0xffff")
        A.VM(f"buffer_load_dword a64, v4, {SR(R_WQKV)}, s{sT} offen", "warm")
        A.I("s_mov_b32 exec_hi, -1")
    R = 12; sQ, sStrip, sJb = 82, 83, 91
    A.I(f"s_and_b32 s{sI}, s{S_X}, 3"); A.I(f"s_lshl_b32 s{sI}, s{sI}, 2"); A.I(f"s_and_b32 s{sT}, s{S_R}, 3"); A.I(f"s_add_u32 s{sI}, s{sI}, s{sT}")
    A.I(f"s_lshr_b32 s{sJ}, s{S_X}, 2"); A.I(f"s_lshl_b32 s{sJ}, s{sJ}, 3"); A.I(f"s_lshr_b32 s{sT}, s{S_R}, 2"); A.I(f"s_add_u32 s{sJ}, s{sJ}, s{sT}")
    A.I(f"s_lshl_b32 s{sTT}, s{sI}, 2"); A.I(f"s_add_u32 s{sTT}, s{sTT}, s{S_W}")
    A.I(f"v_lshrrev_b32 v{V_DQ}, 2, v1"); A.I(f"v_mul_u32_u24 v{V_DQ}, 3072, v{V_DQ}")
    A.I(f"v_and_b32 v4, 3, v1"); A.I(f"v_lshl_add_u32 v{V_DQ}, v4, 4, v{V_DQ}")
    A.I(f"v_lshrrev_b32 v4, 4, v1"); A.I(f"v_and_b32 v{vXb}, 15, v1"); A.I(f"v_xor_b32 v{vXb}, v{vXb}, v4")
    A.I(f"v_lshlrev_b32 v{vXb}, 4, v{vXb}"); A.I(f"v_lshl_add_u32 v{vXb}, v4, 10, v{vXb}")
    A.I(f"s_lshl_b32 s{sU}, s{S_W}, 15"); A.I(f"s_add_u32 s{sU}, s{sU}, 32768")
    A.I(f"v_lshrrev_b32 v4, 5, v1"); A.I(f"v_and_b32 v{vXr}, 15, v1"); A.I(f"v_xor_b32 v{vXr}, v{vXr}, v4"); A.I(f"v_lshlrev_b32 v{vXr}, 4, v{vXr}")
    A.I(f"v_and_b32 v4, 31, v1"); A.I(f"v_lshl_add_u32 v{vXr}, v4, 8, v{vXr}"); A.I(f"v_add_u32 v{vXr}, s{sU}, v{vXr}")
    def xchunk(c):
        A.I(f"s_lshl_b32 s{sT}, s{sTT}, 15"); A.I(f"s_add_u32 s{sT}, s{sT}, {256*c}")
        for m in range(8):
            A.I(f"s_add_u32 m0, s{sU}, {8192*c + 1024*m}")
            A.I(f"v_xor_b32 v{vTmp+(m&1)}, {((4*m) & 15) << 4}, v{vXb}")
            A.VM(f"buffer_load_dwordx4 v{vTmp+(m&1)}, {SR(R_AX)}, s{sT} offen lds", f"xc{c}")
            A.I(f"s_add_u32 s{sT}, s{sT}, 4096")
    def xreads(c):
        A.wait_vm(f"xc{c}")
        for k in range(8):
            A.I(f"v_xor_b32 v{vTmp+(k&1)}, {k << 5}, v{vXr}")
            n = 8*c + k
            A.I(f"ds_read_b128 v[{vX+4*n}:{vX+4*n+3}], v{vTmp+(k&1)} offset:{8192*c}")
    def stats(c):
        A.I("s_waitcnt lgkmcnt(0)")
        for n in range(8*c, 8*c+8):
            for q in range(4):
                A.I(f"v_dot2c_f32_bf16 v{vSum}, v{vX+4*n+q}, v{vOne}")
                A.I(f"v_dot2c_f32_bf16 v{vSum+1}, v{vX+4*n+q}, v{vX+4*n+q}")
    W = qkv_w_feeder(A, [12288*g for g in range(8)], raw=True)
    xchunk(0)
    stamp(A, "q0_iss")
    setup2(A)
    if P['t0'] == 3: w_touch()
    xchunk(1)
    code_touch()
    if P['t0'] == 4: w_touch()
    A.I(f"s_cmp_lg_u32 s{S_W}, 0"); A.I("s_cbranch_scc1 q0_nz")
    A.I("v_lshlrev_b32 v4, 12, v1")
    for q in range(4): A.I(f"v_mov_b32 v{vW+q}, 0")
    A.I("s_lshl_b32 s84, s2, 4"); A.I(f"s_add_u32 s84, s84, {FLG:#x}")
    A.I("s_mov_b64 exec, 0xffff")
    A.I(f"buffer_store_dwordx4 v[{vW}:{vW+3}], v4, {WSR}, s84 offen sc0 sc1")
    A.I("s_mov_b64 exec, -1")
    A.L("q0_nz")
    lane_consts(A)
    A.I(f"v_lshrrev_b32 v4, 5, v1"); A.I(f"v_lshl_add_u32 v{vTr0}, v4, 8, v{V_T64}"); A.I(f"v_add_u32 v{vTr1}, 49152, v{vTr0}")
    A.I(f"v_mov_b32 v{vOne}, 0x3f803f80"); A.I(f"v_mov_b32 v{vSum}, 0"); A.I(f"v_mov_b32 v{vSum+1}, 0")
    for q in range(4): A.I(f"v_mov_b32 v{vOnes+q}, 0x3f803f80")
    for q in range(48): A.I(f"v_accvgpr_write_b32 a{q}, 0")
    xreads(0)
    stamp(A, "q0_x0")
    xchunk(2)
    if P['t0'] == 2: w_touch()
    stats(0)
    xreads(1); xchunk(3)
    if P['t0'] == 1: w_touch()
    stats(1)
    xreads(2)
    A.I(f"s_cmp_lg_u32 s{S_W}, 0"); A.I("s_cbranch_scc1 q0_na")
    A.I(f"s_lshl_b32 s{sT}, s{S_XCC}, 5"); A.I(f"v_mov_b32 v{V_RANK}, 1"); A.I("s_mov_b64 exec, 1")
    A.I(f"buffer_atomic_add v{V_RANK}, off, {SR(R_DBG)}, s{sT} sc0 sc1")
    A.I("s_mov_b64 exec, -1")
    A.L("q0_na")
    W.emit(6); stats(2)
    xreads(3); A.I("s_waitcnt lgkmcnt(0)"); A.I("s_barrier")
    stamp(A, "q0_x3")
    W.emit(9); stats(3);
    def reads(n):
        b = vTr0 if n < 16 else vTr1
        o = (n % 16) * 3072; p = vW + 12*(n & 1)
        return [(f"ds_read_b64_tr_b16 v[{p+4*q+2*hh}:{p+4*q+2*hh+1}], v{b} offset:{o+1024*q+256*hh}", f"k{n}q{q}") for q in range(3) for hh in range(2)]
    def late_touch():
        A.I(f"s_lshl_b32 s{sO}, s2, 2"); A.I(f"s_add_u32 s{sO}, s{sO}, s{S_W}"); A.I(f"s_mul_i32 s{sO}, s{sO}, 1376")
        A.I("s_mov_b64 exec, 0xfff")
        A.VM(f"buffer_load_dword a64, v{V_LN}, {SR(R_G)}, s{sO} offen", "warm"); A.VM(f"buffer_load_dword a66, v{V_LN}, {SR(R_U)}, s{sO} offen", "warm")
        A.I("s_mov_b32 exec_lo, 0x1ffffff")
        A.I("v_lshlrev_b32 v4, 20, v1")
        if P['tlb']: A.VM(f"buffer_load_dword a67, v4, {WSR}, 0 offen", "warm")
        A.I("s_mov_b64 exec, -1")
    SCR = XST
    V = ilist(A, stats_fin_list(vSum, vMean, vRstd, vMF, vTmp) + rstd_tr_list(SCR + 4096, vRstd, vRT0, vTmp, sT) + [f"v_mul_f32 v{vTmp+5}, {f32bits(0.25*LOG2E):#x}, v{vRstd}"])
    SY = {0: 1, 8: 3, 16: 5, 24: 7}
    A.wait_vm("wq1"); A.I("s_barrier")
    stamp(A, "q0_w0")
    for r in reads(0): A.LD(*r)
    for n in range(32):
        if n + 1 in SY: A.wait_vm(f"wq{SY[n+1]}"); A.I("s_barrier")
        nx = reads(n+1) if n + 1 < 32 else []
        p = vW + 12*(n & 1); x = v(vX+4*n, 4)
        for q in range(3):
            A.wait_lg(f"k{n}q{q}")
            c = "0" if n == 0 else None
            if q < 2: mfma(A, v((vQ, vK)[q],16), v(p+4*q,4), x, c)
            else: mfma(A, v(vV,16), x, v(p+8,4), c)
            for r in nx[2*q:2*q+2]: A.LD(*r)
            if q == 0 and len(W): W.emit(1)
            if n >= 10: V.emit(1)
            if n == 9 and q == 0: late_touch()
        lab = A.label("q0cs")
        A.I(f"s_cmp_lg_u32 s{S_W}, {n & 3}"); A.I(f"s_cbranch_scc1 {lab}")
        for q in range(3): mfma(A, a(16*q,16), v(vOnes,4), v(p+4*q,4))
        A.L(lab)
    stamp(A, "q0_loop")
    assert not len(V)
    A.I(f"v_lshlrev_b32 v4, 5, v1"); A.I("s_mov_b64 exec, 0xff")
    A.I(f"buffer_load_dword v3, v4, {SR(R_DBG)}, 0 offen sc0 sc1")
    A.I("s_mov_b64 exec, -1")
    A.I(f"s_lshr_b32 s{sT}, s{S_W}, 1"); A.I(f"s_lshl_b32 s{sT}, s{sT}, 9"); A.I(f"s_and_b32 s{sO}, s{S_W}, 1"); A.I(f"s_lshl_b32 s{sO}, s{sO}, 3")
    A.I(f"s_add_u32 s88, s{sT}, s{sO}")
    A.I(f"s_add_u32 s{sT}, s88, {SCR}")
    A.I(f"v_and_b32 v{vTmp+4}, 0x1ff, v2"); A.I(f"v_add_u32 v{vTmp+4}, s{sT}, v{vTmp+4}")
    def split(src, d):
        A.I(f"v_cvt_pk_bf16_f32 v{d}, v{src}, v{src}"); A.I(f"v_and_b32 v{d+1}, 0xffff0000, v{d}")
        A.I(f"v_sub_f32 v{d+1}, v{src}, v{d+1}"); A.I(f"v_cvt_pk_bf16_f32 v{d+1}, v{d+1}, v{d+1}")
    for q in range(3):
        A.I(f"v_accvgpr_read_b32 v{vTmp}, a{16*q}")
        split(vTmp, vW+2*q)
        A.I(f"ds_write_b64 v{vTmp+4}, v[{vW+2*q}:{vW+2*q+1}] offset:{1024*q}")
    A.I("s_waitcnt lgkmcnt(0)"); A.I("s_barrier")
    A.I(f"v_add_u32 v{vTmp}, {SCR}, v2")
    for q in range(3): A.I(f"ds_read_b128 v[{vCS+4*q}:{vCS+4*q+3}], v{vTmp} offset:{1024*q}")
    qkv_out_addr(A, sO, sJ, sTT, sT)
    A.I("s_waitcnt lgkmcnt(0)")
    mfma(A, v(vK,16), v(vCS+4,4), v(vMF,4)); mfma(A, v(vV,16), v(vMF,4), v(vCS+8,4)); mfma(A, v(vQ,16), v(vCS,4), v(vMF,4))
    A.I(f"s_or_b32 s{sT}, s{sI}, s{S_W}"); A.I(f"s_cmp_lg_u32 s{sT}, 0"); A.I("s_cbranch_scc1 q0_nocs")
    A.I(f"s_lshl_b32 s{sT}, s{sJ}, 10"); A.I(f"s_add_u32 s{sT}, s{sT}, {CSQ:#x}")
    for q in range(3):
        A.I(f"buffer_store_dwordx4 v[{vCS+4*q}:{vCS+4*q+3}], v2, {WSR}, s{sT} offen sc1"); A.I(f"s_add_u32 s{sT}, s{sT}, 16384")
    A.L("q0_nocs")
    A.nop(8)
    L = fin_list(vK, lambda i: vRstd, vW, [f"buffer_store_dwordx4 v[{vW+4*h}:{vW+4*h+3}], v{V_KA}, {WSR}, s{sO+1+h} offen sc1" for h in range(2)])
    L += fin_list(vV, lambda i: vRT+i, vW+8, [f"buffer_store_dwordx4 v[{vW+8+4*h}:{vW+8+4*h+3}], v{V_VA}, {WSR}, s{sO+1} offen offset:{512*h} sc1" for h in range(2)])
    L += fin_list(vQ, lambda i: vTmp+5, vW+16, [f"buffer_store_dwordx4 v[{vW+16+4*h}:{vW+16+4*h+3}], v2, {WSR}, s{sO} offen offset:{1024*h} sc1" for h in range(2)])
    ilist(A, L).flush()
    stamp(A, "q0_stored")
    A.I("s_waitcnt vmcnt(0)"); A.vm = []
    A.I(f"s_cmp_lg_u32 s{S_W}, 0"); A.I("s_cbranch_scc1 q0_nr")
    A.I(f"v_mov_b32 v{vTmp}, {QK_SCR}"); A.I("s_mov_b64 exec, 1"); A.I(f"ds_write_b32 v{vTmp}, v{V_RANK}"); A.I("s_mov_b64 exec, -1")
    A.I("s_waitcnt lgkmcnt(0)")
    A.L("q0_nr")
    A.I("s_barrier")
    A.I(f"s_lshl_b32 s{sT}, s{sJ}, 4"); A.I(f"s_add_u32 s{sT}, s{sT}, s{sI}")
    A.I(f"v_mov_b32 v{vTmp}, {QK_SCR}"); A.I(f"ds_read_b32 v{V_RANK}, v{vTmp}")
    A.I(f"s_mov_b32 s{S_SPIN}, 0")
    A.I("s_mov_b64 exec, 0xff")
    A.I("s_branch q0_pc2")
    A.L("q0_pc")
    A.I(f"buffer_load_dword v3, v4, {SR(R_DBG)}, 0 offen sc0 sc1")
    A.I(f"s_add_u32 s{S_SPIN}, s{S_SPIN}, 1"); A.I(f"s_cmp_gt_u32 s{S_SPIN}, 0x80000"); A.I("s_cbranch_scc1 L_abort")
    A.L("q0_pc2")
    A.I("s_waitcnt vmcnt(0) lgkmcnt(0)")
    A.I("v_cmp_eq_u32 vcc, 32, v3")
    A.I("v_readlane_b32 s84, v3, 0")
    for l in range(1, 8):
        A.I(f"v_readlane_b32 s85, v3, {l}"); A.nop(1); A.I("s_add_u32 s84, s84, s85")
    A.I("s_cmp_lg_u32 s84, 256"); A.I("s_cbranch_scc1 q0_pc")
    A.I("s_mov_b64 exec, -1")
    for i in flag_addr(A, 96, F_QKV, sT): A.I(i)
    post_wave(A, 96, " sc0 sc1"); A.vm = []
    stamp(A, "q0_posted")
    if P['rfgap']: rf_loads(A)
    A.I("s_cmp_eq_u32 vcc_lo, 0xff"); A.I("s_cselect_b32 s84, 1, 0")
    if P['force_g']: A.I("s_mov_b32 s84, 0")
    A.I(f"v_readfirstlane_b32 s85, v{V_RANK}")
    A.I("s_cmp_eq_u32 s84, 1")
    A.nop(2)
    A.I(f"s_cselect_b32 s{S_R}, s85, s{S_R}"); A.I(f"s_cselect_b32 s{S_X}, s{S_XCC}, s{S_X}")
    touch_regs(A)
    A.I("s_cmp_eq_u32 s84, 1"); A.I("s_cbranch_scc0 G_att")
    A.I("s_branch L_att")

def x_feeder(A, sXo, n, tag="x"):
    X = Feeder(A)
    for i in range(n):
        def f(i=i):
            A.VM(f"buffer_load_dwordx4 a[{4*i}:{4*i+3}], v2, {WSR}, s{sXo} offen offset:{1024*(i%4)}{LD}", f"x{i}")
            if i % 4 == 3: A.I(f"s_add_u32 s{sXo}, s{sXo}, 4096")
        X.add(f)
    return X

def ph_qkv(A):
    sI, sJ, sTT, sXo, sT, sO = 70, 71, 72, 73, 74, 75
    vB, vST, vCS, vMF, vMean, vRstd, vTmp = 4, 8, 24, 36, 40, 41, 42
    vW, vQ, vK, vV, vRT, vO = 48, 72, 88, 104, 120, 136
    coords_ij(A, sI, sJ)
    A.I(f"s_lshl_b32 s{sTT}, s{sI}, 2"); A.I(f"s_add_u32 s{sTT}, s{sTT}, s{S_W}")
    A.I(f"s_lshl_b32 s{sXo}, s{sTT}, 15"); A.I(f"s_add_u32 s{sXo}, s{sXo}, {XB:#x}")
    mk_windows(A, vB, V_T64)
    A.I(f"s_lshl_b32 s{sT}, s{sJ}, 10"); A.I(f"s_add_u32 s{sT}, s{sT}, {CSQ:#x}")
    for q in range(3):
        A.VM(f"buffer_load_dwordx4 v[{vCS+4*q}:{vCS+4*q+3}], v2, {WSR}, s{sT} offen{LD}", "cs"); A.I(f"s_add_u32 s{sT}, s{sT}, 16384")
    qkv_out_addr(A, sO, sJ, sTT, sT)
    A.I(f"s_lshl_b32 s{sT}, s{sI}, 4")
    A.I(f"s_lshl_b32 s78, s{sJ}, 4"); A.I(f"s_add_u32 s78, s78, s{sI}")
    for i in flag_addr(A, 79, F_QKV, 78): A.I(i)
    A.I(f"s_lshl_b32 s78, s{sTT}, 12"); A.I(f"s_add_u32 s78, s78, {STX:#x}")
    poll(A, F_DN - LSTR, sT, 16)
    stamp(A, "qkv_polled")
    X = x_feeder(A, sXo, 32)
    X.emit(6); stats_load(A, vST, 78); X.emit(2)
    def rd(n, q, p):
        k, o = win(QK_GRP[n//4] + (n % 4)*3072)
        return [(f"ds_read_b64_tr_b16 v[{p+2*hh}:{p+2*hh+1}], v{vB+k} offset:{o+1024*q+512*hh}", f"k{n}q{q}") for hh in range(2)]
    seq = [(n, q) for n in range(32) for q in (1, 2)] + [(n, 0) for n in range(32)]
    DEP = 4
    for j in range(DEP - 1):
        for r in rd(*seq[j], vW + 4*(j % DEP)): A.LD(*r)
    V = ilist(A, stats_reduce_list(vST) + stats_fin_list(vST, vMean, vRstd, vMF, vTmp) + rstd_tr_list(QK_SCR, vRstd, vRT, vTmp, sT)
              + [f"v_mul_f32 v{vTmp}, {f32bits(0.25*LOG2E):#x}, v{vRstd}"])
    E = ilist(A, fin_list(vK, lambda i: vRstd, vO, [f"buffer_store_dwordx4 v[{vO+4*h}:{vO+4*h+3}], v{V_KA}, {WSR}, s{sO+1+h} offen sc1" for h in range(2)])
              + fin_list(vV, lambda i: vRT+i, vO+8, [f"buffer_store_dwordx4 v[{vO+8+4*h}:{vO+8+4*h+3}], v{V_VA}, {WSR}, s{sO+1} offen offset:{512*h} sc1" for h in range(2)]))
    for j, (n, q) in enumerate(seq):
        p = vW + 4*(j % DEP); x = a(4*n, 4)
        if j < 64 and q == 1:
            A.wait_vm(f"x{n}")
            if n == 0: stamp(A, "qkv_x0")
        if j == 64:
            mfma(A, v(vK,16), v(vCS+4,4), v(vMF,4)); mfma(A, v(vV,16), v(vMF,4), v(vCS+8,4))
        A.wait_lg(f"k{n}q{q}")
        c = "0" if n == 0 else None
        if q == 0: mfma(A, v(vQ,16), v(p,4), x, c)
        elif q == 1: mfma(A, v(vK,16), v(p,4), x, c)
        else: mfma(A, v(vV,16), x, v(p,4), c)
        if j + DEP - 1 < len(seq):
            for r in rd(*seq[j+DEP-1], vW + 4*((j+DEP-1) % DEP)): A.LD(*r)
        if q == 1: X.emit(1)
        if 16 <= j < 64: V.emit(2)
        if j >= 68: E.emit(2)
    assert not len(V) and not len(X) and not len(E), (len(V), len(E))
    mfma(A, v(vQ,16), v(vCS,4), v(vMF,4))
    stamp(A, "qkv_loop")
    A.nop(12)
    ilist(A, fin_list(vQ, lambda i: vTmp, vO+16, [f"buffer_store_dwordx4 v[{vO+16+4*h}:{vO+16+4*h+3}], v2, {WSR}, s{sO} offen offset:{1024*h}{STL()}" for h in range(2)])).flush()
    stamp(A, "qkv_stored")
    post_wave(A, 79, " sc0 sc1")
    stamp(A, "qkv_posted")
    A.I("s_barrier")

def rf_loads(A):
    R = 92; sQ, sStrip = 80, 81
    nojob = A.label('nojob')
    A.I("s_mov_b32 s91, 0")
    A.I("s_cmp_ge_u32 s2, 172"); A.I("s_cselect_b32 s84, 1, 0"); A.I(f"s_lshr_b32 s85, s{S_W}, 1"); A.I("s_or_b32 s84, s84, s85")
    A.I("s_cmp_lg_u32 s84, 0"); A.I("s_cbranch_scc1 " + nojob)
    A.I(f"s_lshr_b32 s{sStrip}, s2, 1"); A.I(f"s_and_b32 s{sQ}, s2, 1"); A.I(f"s_lshl_b32 s{sQ}, s{sQ}, 1"); A.I(f"s_add_u32 s{sQ}, s{sQ}, s{S_W}")
    A.I(f"s_cmp_ge_u32 s{sStrip}, 43")
    A.I(f"s_cselect_b32 s{R}, s{P_U}, s{P_G}"); A.I(f"s_cselect_b32 s{R+1}, s{P_U+1}, s{P_G+1}"); A.I(f"s_cselect_b32 s85, 43, 0")
    A.I(f"s_and_b32 s{R+1}, s{R+1}, 0xffff"); A.I(f"s_mov_b32 s{R+2}, {512*1376*2:#x}"); A.I(f"s_mov_b32 s{R+3}, 0x20000")
    A.I(f"s_sub_u32 s{sStrip}, s{sStrip}, s85")
    A.I(f"s_mul_i32 s86, s{sQ}, {128*2752}"); A.I(f"s_lshl_b32 s87, s{sStrip}, 6"); A.I("s_add_u32 s86, s86, s87")
    A.I(f"s_lshl_b32 s84, s{S_W}, 13")
    for m in range(8):
        A.I(f"s_add_u32 m0, s84, {JOB_LDS + 1024*m}"); A.nop(1)
        A.I(f"buffer_load_dwordx4 v{V_DG}, {SR(R)}, s86 offen lds")
        A.I(f"s_add_u32 s86, s86, {16*2752}")
    A.I(f"s_lshl_b32 s91, s{sStrip}, 11"); A.I(f"s_add_u32 s91, s91, {CSG:#x}")
    A.I(f"s_lshr_b32 s87, s{sQ}, 1"); A.I("s_lshl_b32 s87, s87, 9"); A.I("s_add_u32 s91, s91, s87")
    A.I(f"s_and_b32 s87, s{sQ}, 1"); A.I("s_lshl_b32 s87, s87, 3"); A.I("s_add_u32 s91, s91, s87")
    A.I("s_cmp_lg_u32 s85, 0"); A.I("s_cselect_b32 s87, 256, 0"); A.I("s_add_u32 s91, s91, s87")
    A.L(nojob)
    RFV = 160
    A.I(f"s_lshl_b32 s80, s2, 2"); A.I(f"s_add_u32 s80, s80, s{S_W}")
    A.I(f"s_bitcmp1_b32 s{S_W}, 0")
    A.I(f"s_cselect_b32 s{R}, s{P_U}, s{P_G}"); A.I(f"s_cselect_b32 s{R+1}, s{P_U+1}, s{P_G+1}"); A.I("s_cselect_b32 s81, 32, 0")
    A.I(f"s_and_b32 s{R+1}, s{R+1}, 0xffff"); A.I(f"s_mov_b32 s{R+2}, {512*1376*2:#x}"); A.I(f"s_mov_b32 s{R+3}, 0x20000")
    A.I(f"v_xor_b32 v150, s81, v{V_DG}")
    for k in range(3):
        A.I(f"s_add_u32 s84, s80, {1024*k}")
        A.I("s_lshr_b32 s85, s84, 6"); A.I("s_lshl_b32 s85, s85, 6")
        A.I("s_bfe_u32 s96, s84, 0x50001"); A.I(f"s_mul_i32 s96, s96, {16*2752}"); A.I("s_add_u32 s85, s85, s96")
        A.I(f"s_lshl_b32 s{86+k}, s84, 10"); A.I(f"s_add_u32 s{86+k}, s{86+k}, {WFG:#x}")
        if k == 2:
            A.I("s_cmp_ge_u32 s84, 2752"); A.I("s_cselect_b32 s85, 0xf0000000, s85"); A.I(f"s_cselect_b32 s{86+k}, 0xf0000000, s{86+k}")
        A.I(f"buffer_load_dwordx4 v[{RFV+4*k}:{RFV+4*k+3}], v150, {SR(R)}, s85 offen")
    for k in range(2):
        if k == 0: A.I("s_mov_b32 s84, s80")
        else: A.I("s_add_u32 s84, s80, 512")
        A.I("s_mul_i32 s85, s84, 683"); A.I("s_lshr_b32 s85, s85, 16")
        A.I("s_mul_i32 s96, s85, 96"); A.I("s_sub_u32 s96, s84, s96")
        A.I("s_mul_i32 s97, s96, 171"); A.I("s_lshr_b32 s97, s97, 9")
        A.I("s_mul_i32 s8, s97, 3"); A.I("s_sub_u32 s96, s96, s8")
        A.I("s_lshl_b32 s85, s85, 6"); A.I("s_lshl_b32 s96, s96, 10"); A.I("s_add_u32 s85, s85, s96")
        A.I("s_mul_i32 s97, s97, 49152"); A.I("s_add_u32 s85, s85, s97")
        A.I(f"s_lshl_b32 s{89+k}, s84, 10")
        if k == 1:
            A.I("s_cmp_lt_u32 s80, 512"); A.I("s_cselect_b32 s85, 0xf0000000, s85"); A.I(f"s_cselect_b32 s{89+k}, 0xf0000000, s{89+k}")
        A.I(f"buffer_load_dwordx4 v[{RFV+12+4*k}:{RFV+12+4*k+3}], v{V_DQ}, {SR(R_WQKV)}, s85 offen")

PARK = 188
def park_loads(A, k0, k1, st):
    if not P['park']: return
    lab = A.label("nopark")
    A.I(f"s_cmp_lg_u32 s{S_L}, 0"); A.I(f"s_cbranch_scc1 {lab}")
    A.I(f"s_lshr_b32 s{st}, s{S_R}, 1"); A.I(f"s_mul_i32 s{st}, s{st}, 98304"); A.I(f"s_mul_i32 s97, s{S_W}, 3072"); A.I(f"s_add_u32 s{st}, s{st}, s97")
    for k in range(k0, k1):
        g, q = divmod(k + 9, 3)
        A.I(f"s_add_u32 s97, s{st}, {WFQ + g*12288}")
        A.I(f"buffer_load_dwordx4 a[{PARK+4*k}:{PARK+4*k+3}], v2, {WSR}, s97 offen offset:{1024*q}{LD}")
    A.L(lab)
def park_writes(A, vb):
    A.I(f"s_mul_i32 s97, s{S_W}, 3072"); A.I(f"v_add_u32 v{vb}, s97, v2")
    mk_windows(A, vb, vb)
    for k in range(15):
        g, q = divmod(k + 9, 3)
        w_, o = win(QK_GRP[g])
        A.I(f"ds_write_b128 v{vb+w_}, a[{PARK+4*k}:{PARK+4*k+3}] offset:{o + 1024*q}")

def touch_regs(A):
    t, t2 = 148, 149
    sA, sB, sC, sD = 92, 93, 94, 95
    coords_tc(A, sA, sB)
    A.I(f"s_lshl_b32 s{sA}, s{sA}, 1"); A.I(f"s_and_b32 s{sC}, s{S_W}, 1"); A.I(f"s_add_u32 s{sA}, s{sA}, s{sC}")
    A.I(f"s_lshl_b32 s{sC}, s{sA}, 12"); A.I(f"s_lshl_b32 s{sD}, s{sB}, 9"); A.I(f"s_add_u32 s{sC}, s{sC}, s{sD}")
    A.I(f"s_lshl_b32 s{sA}, s{sA}, 15"); A.I(f"s_lshl_b32 s{sB}, s{sB}, 12"); A.I(f"s_add_u32 s{sA}, s{sA}, s{sB}")
    A.I(f"s_lshr_b32 s{sB}, s{S_W}, 1"); A.I(f"s_lshl_b32 s{sB}, s{sB}, 11"); A.I(f"s_add_u32 s{sA}, s{sA}, s{sB}")
    A.I(f"v_and_b32 v{t}, 15, v1"); A.I(f"v_lshlrev_b32 v{t}, 7, v{t}")
    def sel(dst, lo, hi, base_s, extra, mask=None):
        A.I(f"s_add_u32 s97, s{base_s}, {(extra - lo*128) & M32:#x}")
        m = ((1 << hi) - (1 << lo))
        A.I(f"s_mov_b32 exec_lo, {m & M32:#x}"); A.I(f"s_mov_b32 exec_hi, {m >> 32:#x}")
        A.I(f"v_add_u32 v{dst}, s97, v{V_LN}")
        A.I("s_mov_b64 exec, -1")
    A.I(f"s_lshl_b32 s{sB}, s{S_X}, 18"); A.I(f"s_lshl_b32 s{sD}, s{S_W}, 16"); A.I(f"s_add_u32 s{sB}, s{sB}, s{sD}")
    A.I(f"s_lshl_b32 s{sD}, s{S_R}, 10"); A.I(f"s_add_u32 s{sB}, s{sB}, s{sD}")
    A.I(f"s_add_u32 s97, s{sB}, {OF:#x}"); A.I(f"v_mov_b32 v{V_TA}, s97")
    sel(V_TA, 0, 8, sB, OF); sel(V_TA, 8, 16, sB, OF + 32768); sel(V_TA, 16, 32, sA, XB); sel(V_TA, 32, 36, sC, STX)
    coords_ij(A, sA, sB)
    A.I(f"s_lshl_b32 s{sA}, s{sA}, 2"); A.I(f"s_add_u32 s{sA}, s{sA}, s{S_W}")
    A.I(f"s_lshl_b32 s{sB}, s{sB}, 11"); A.I(f"s_lshl_b32 s{sC}, s{sA}, 15"); A.I(f"s_add_u32 s{sB}, s{sB}, s{sC}")
    A.I(f"s_add_u32 s97, s{sB}, {OF:#x}"); A.I(f"v_mov_b32 v{V_TC}, s97")
    sel(V_TC, 0, 16, sB, OF)
    A.I("s_mov_b32 exec_lo, 0x00ff0000"); A.I("s_mov_b32 exec_hi, 0")
    A.I(f"v_lshlrev_b32 v{V_TC}, 19, v1"); A.I(f"v_add_u32 v{V_TC}, {(KV + KVS - (16 << 19)) & M32:#x}, v{V_TC}")
    A.I("s_mov_b64 exec, -1")
    gu_u0(A, sB)
    A.I(f"s_mul_i32 s{sA}, s{sA}, 86"); A.I(f"s_add_u32 s{sA}, s{sA}, s{sB}"); A.I(f"s_lshl_b32 s{sA}, s{sA}, 10")
    A.I(f"s_add_u32 s97, s{sA}, {HF:#x}"); A.I(f"v_mov_b32 v{V_TB}, s97")
    sel(V_TB, 0, 48, sA, HF)
def pretouch(A, reg, areg, track=True):
    ins = f"buffer_load_dword a{areg}, v{reg}, {WSR}, 0 offen sc1"
    if not P['pret']: return
    if track: A.VM(ins, "warm")
    else: A.I(ins)

TB = 2080
def ph_attn(A, pre, Wgu):
    sH, sQB, sT, sK, sM, sIt, sEnd, sPh, sRot, sO, sSy = 70, 71, 72, 73, 74, 75, 76, 77, 78, 79, 82
    sWa = 83
    sQO = 76
    sEnd, sPh = 92, 93
    QA, QB_, idx, aK, aVa, aVb = 4, 8, 36, 37, 38, 39
    Kr = [12, 16]; VAr = [20, 28]; VBr = [24, 32]
    SA, SB, OA, OB, CA, CB = 40, 56, 72, 88, 104, 120
    tmp = 136
    bK, bVa, bVb = tmp+8, tmp+9, tmp+10
    A.L(pre + "_att")
    A.I(f"s_mov_b32 s{sH}, s{S_R}"); A.I(f"s_mov_b32 s{sQB}, s{S_X}")
    for i in range(4): A.I(f"v_mov_b32 v{tmp+i}, 0x3f803f80")
    A.I(f"v_mul_u32_u24 v{tmp+4}, {TB}, v1")
    A.I(f"ds_write_b128 v{tmp+4}, v[{tmp}:{tmp+3}] offset:2048")
    for i in range(4): A.I(f"v_mov_b32 v{SA+i}, 0")
    A.I(f"ds_write_b128 v{tmp+4}, v[{SA}:{SA+3}] offset:2064")
    A.I(f"v_mov_b32 v{idx}, 0xdddddddd"); A.I(f"v_mov_b32 v{bK}, v2")
    A.I(f"v_and_b32 v{bVa}, 0xffff, v{V_VA}"); A.I(f"v_add_u32 v{bVb}, 512, v{bVa}")
    A.I(f"v_and_b32 v{tmp+5}, 27, v1"); A.I(f"v_cmp_ne_u32 vcc, 16, v{tmp+5}"); A.I(f"v_mov_b32 v{tmp+6}, 2048"); A.I(f"v_mov_b32 v{tmp+7}, 2064")
    A.I(f"v_and_b32 v{tmp+5}, 16, v1"); A.I(f"v_cndmask_b32 v{tmp+6}, v{tmp+6}, v{tmp+7}, vcc"); A.I(f"v_cmp_ne_u32 vcc, 0, v{tmp+5}")
    A.nop(2)
    A.I(f"v_cndmask_b32 v{bVa}, v{bVa}, v{tmp+6}, vcc"); A.I(f"v_cndmask_b32 v{bVb}, v{bVb}, v{tmp+6}, vcc")
    A.I(f"s_lshl_b32 s{sK}, s{sH}, 17"); A.I(f"s_lshl_b32 s{sT}, s{S_L}, 22"); A.I(f"s_add_u32 s{sK}, s{sK}, s{sT}"); A.I(f"s_add_u32 s{sK}, s{sK}, {KV:#x}")
    A.I(f"s_add_u32 s12, s{R_WS}, s{sK}"); A.I(f"s_addc_u32 s13, s{R_WS+1}, 0"); A.I("s_mov_b32 s14, 131072"); A.I("s_mov_b32 s15, 0x20000")
    A.I(f"s_lshl_b32 s{sO}, s{sQB}, 18"); A.I(f"s_lshl_b32 s{sT}, s{S_W}, 16"); A.I(f"s_add_u32 s{sO}, s{sO}, s{sT}")
    A.I(f"s_lshl_b32 s{sT}, s{sH}, 10"); A.I(f"s_add_u32 s{sO}, s{sO}, s{sT}"); A.I(f"s_add_u32 s{sQO}, s{sO}, {OF:#x}"); A.I(f"s_add_u32 s{sQO+1}, s{sQO}, 32768")
    A.I(f"s_lshl_b32 s{sRot}, s{sQB}, 3"); A.I(f"s_add_u32 s{sRot}, s{sRot}, s{S_W}"); A.I(f"s_lshl_b32 s{sRot}, s{sRot}, 11")
    A.I(f"s_mul_i32 s{sM}, s{S_W}, {TB}")
    A.I(f"s_mul_i32 s{sWa}, s{S_R}, 44032"); A.I(f"s_mul_i32 s{sT}, s{S_W}, 11264"); A.I(f"s_add_u32 s{sWa}, s{sWa}, s{sT}")
    def init():
        A.I(f"v_mov_b32 v{aK}, v{bK}"); A.I(f"v_mov_b32 v{aVa}, v{bVa}"); A.I(f"v_mov_b32 v{aVb}, v{bVb}")
        for i in range(32): A.I(f"v_mov_b32 v{OA+i}, 0")
        for i in range(8): A.I(f"v_mov_b32 v{SB+8+i}, 0")
        for i in range(4): A.I(f"v_mov_b32 v{VBr[1]+i}, 0")
    init()
    A.I(f"s_lshr_b32 s{sT}, s{sH}, 1"); A.I(f"s_lshl_b32 s{sT}, s{sT}, 4")
    for i in poll_addr(sSy, F_QKV, sT): A.I(i)
    A.I(f"s_lshl_b32 s{sIt}, s{S_X}, 1"); A.I(f"s_add_u32 s{sT}, s{sT}, s{sIt}")
    A.I("s_waitcnt lgkmcnt(0)")
    poll(A, F_QKV, sT, 2, wsync=False)
    stamp(A, "att_polled")
    A.VM(f"buffer_load_dwordx4 v[{QA}:{QA+3}], v2, {WSR}, s{sQO} offen{LD}", "q")
    def kv_round(tag):
        def fk():
            A.I(f"s_mov_b32 m0, s{sM}"); A.I(f"s_add_u32 s{sM}, s{sM}, {4*TB}")
            A.VM(f"buffer_load_dwordx4 v2, s[12:15], s{sRot} offen{LD} lds", tag)
        def fv():
            A.VM(f"buffer_load_dwordx4 v2, s[12:15], s{sRot} offen offset:1024{LD} lds", tag)
            A.I(f"s_add_u32 s{sRot}, s{sRot}, 8192"); A.I(f"s_and_b32 s{sRot}, s{sRot}, 0x1ffff")
        return [fk, fv]
    def feed(fs):
        F = Feeder(A)
        for f in fs: F.add(f)
        return F
    feed(kv_round("r0")).flush()
    A.VM(f"buffer_load_dwordx4 v[{QB_}:{QB_+3}], v2, {WSR}, s{sQO+1} offen{LD}", "r0")
    feed(kv_round("r1")).flush()
    A.VM(poll_load(16, CA, sSy), "pf")
    lab = A.label("norf")
    A.I(f"s_cmp_lg_u32 s{S_L}, 0"); A.I(f"s_cbranch_scc1 {lab}")
    for k in range(5): A.I(f"buffer_store_dwordx4 v[{160+4*k}:{163+4*k}], v2, {WSR}, s{86+k} offen sc1")
    A.I("s_cmp_eq_u32 s91, 0"); A.I(f"s_cbranch_scc1 {lab}")
    J = 180
    A.I(f"s_lshl_b32 s{sT}, s{S_W}, 13"); A.I(f"s_add_u32 s{sT}, s{sT}, {JOB_LDS}"); A.I(f"v_add_u32 v{tmp+4}, s{sT}, v{V_T64}")
    for m in range(8):
        A.I(f"ds_read_b64_tr_b16 v[{J+4*m}:{J+4*m+1}], v{tmp+4} offset:{1024*m}")
        A.I(f"ds_read_b64_tr_b16 v[{J+4*m+2}:{J+4*m+3}], v{tmp+4} offset:{1024*m+512}")
        if m == 3: A.I("s_waitcnt lgkmcnt(0)")
    A.I("s_waitcnt lgkmcnt(0)")
    for m in range(8): mfma(A, v(CB,16), v(tmp,4), v(J+4*m,4), "0" if m == 0 else None)
    A.I(f"v_bfe_u32 v{tmp+4}, v1, 4, 1"); A.I(f"v_lshlrev_b32 v{tmp+4}, 10, v{tmp+4}"); A.I(f"v_and_b32 v{tmp+5}, 15, v1"); A.I(f"v_lshl_add_u32 v{tmp+4}, v{tmp+5}, 4, v{tmp+4}")
    A.nop(10)
    A.I(f"v_cvt_pk_bf16_f32 v{J}, v{CB}, v{CB}"); A.I(f"v_and_b32 v{J+1}, 0xffff0000, v{J}")
    A.I(f"v_sub_f32 v{J+1}, v{CB}, v{J+1}"); A.I(f"v_cvt_pk_bf16_f32 v{J+1}, v{J+1}, v{J+1}")
    A.I("s_mov_b32 exec_hi, 0")
    A.I(f"buffer_store_dwordx2 v[{J}:{J+1}], v{tmp+4}, {WSR}, s91 offen sc1")
    A.I("s_mov_b32 exec_hi, -1")
    A.L(lab)
    def wait_cls(n):
        lab, lab2 = A.label("wc"), A.label("wc2")
        A.I(f"s_waitcnt vmcnt({n+6})"); A.I(f"s_cmp_lg_u32 s{S_L}, 0"); A.I(f"s_cbranch_scc1 {lab2}")
        A.I("s_cmp_lg_u32 s91, 0"); A.I(f"s_cbranch_scc1 {lab}")
        A.I(f"s_waitcnt vmcnt({n+5})"); A.I(f"s_branch {lab}")
        A.L(lab2)
        A.I(f"s_waitcnt vmcnt({n})")
        A.L(lab)
    loopa, loopb, back, done = pre + "_aloopa", pre + "_aloopb", pre + "_aback", pre + "_adone"
    def first():
        A.I(f"ds_read_b128 v[{Kr[0]}:{Kr[0]+3}], v{aK}"); A.I(f"ds_read_b128 v[{VAr[0]}:{VAr[0]+3}], v{aVa}"); A.I(f"ds_read_b128 v[{VBr[0]}:{VBr[0]+3}], v{aVb}")
        A.I("s_waitcnt lgkmcnt(0)")
        mfma(A, v(SA,16), v(Kr[0],4), v(QA,4), "0")
        A.nop(12)
    U = 4
    def ex(S, i): A.I(f"v_exp_f32 v{S+i}, v{S+i}")
    def smf(O, Vr, Pp): A.I(f"v_smfmac_f32_32x32x32_bf16 v[{O}:{O+15}], v[{Vr}:{Vr+3}], v[{Pp}:{Pp+7}], v{idx}")
    def body(F, end, slots=(0, 1, 2), hook=None):
        def fe(k):
            if F and k in slots: F.emit(1)
        for u in range(U):
            p = u & 1; q = p ^ 1; last = (u == U-1)
            if hook: hook(u)
            ex(SA,0); ex(SA,1)
            smf(OB, VBr[q], SB+8)
            A.I(f"ds_read_b128 v[{Kr[q]}:{Kr[q]+3}], v{aK} offset:{TB*(u+1)}")
            ex(SA,2); ex(SA,3); ex(SA,4)
            mfma(A, v(SB,16), v(Kr[p],4), v(QB_,4), "0")
            A.I(f"ds_read_b128 v[{VAr[q]}:{VAr[q]+3}], v{aVa} offset:{TB*(u+1)}")
            for i in range(5, 10): ex(SA, i)
            smf(OA, VAr[p], SA)
            A.I(f"ds_read_b128 v[{VBr[q]}:{VBr[q]+3}], v{aVb} offset:{TB*(u+1)}")
            for i in range(10, 16): ex(SA, i)
            ex(SB,0); ex(SB,1)
            smf(OA, VBr[p], SA+8)
            fe(0)
            A.I("s_waitcnt lgkmcnt(0)")
            ex(SB,2); ex(SB,3); ex(SB,4)
            mfma(A, v(SA,16), v(Kr[q],4), v(QA,4), "0")
            fe(1)
            for i in range(5, 10): ex(SB, i)
            smf(OB, VAr[p], SB)
            fe(2)
            if last:
                if end: A.I(f"s_add_u32 s{sIt}, s{sIt}, 1"); A.I(f"s_cmp_lt_u32 s{sIt}, {end}")
                A.I(f"v_add_u32 v{aK}, {TB*U}, v{aK}"); A.I(f"v_add_u32 v{aVa}, {TB*U}, v{aVa}"); A.I(f"v_add_u32 v{aVb}, {TB*U}, v{aVb}")
            for i in range(10, 16): ex(SB, i)
        assert not F or not len(F)
    wait_cls(3); A.I("s_barrier")
    stamp(A, "att_first")
    first()
    def h0(u):
        if u == 1:
            poll_check(A, 16, CA, sSy, lambda: wait_cls(0)); A.vm = []
            A.I("s_barrier")
            stamp(A, "att_all")
    F0 = feed([lambda: None, lambda: None] + kv_round("r2") + kv_round("r3") + [lambda: None, lambda: None])
    body(F0, None, slots=(1, 2), hook=h0)
    def h1(u):
        if u == 3: A.wait_vm("r3"); A.I("s_barrier")
    body(feed(kv_round("r4") + kv_round("r5") + kv_round("r6") + kv_round("r7")), None, slots=(1, 2), hook=h1)
    post_wg(A, F_RF, " sc0 sc1")
    stamp(A, "a_it2")
    body(feed(kv_round("r8") + kv_round("r9")), None, slots=(1,))
    A.wait_vm("r7"); A.I("s_barrier")
    A.I(f"s_mov_b32 s{sIt}, 3")
    A.I(".p2align 6")
    A.L(loopa)
    body(feed(kv_round("rx") + kv_round("rx")), 6, slots=(1,))
    A.I(f"s_cbranch_scc1 {loopa}")
    stamp(A, "a_it6")
    A.vm = []
    A.I(f"s_mov_b32 s{sO}, {F_RF:#x}")
    body(feed([lambda: A.I(f"buffer_load_dwordx4 v[{CA}:{CA+3}], v2, {WSR}, s{sO} offen sc0 sc1")]), None, slots=(1,))
    lab, lab2 = A.label("rfpoll"), A.label("rfok")
    A.I(f"s_mov_b32 s{S_SPIN}, 0")
    A.L(lab)
    A.I("s_waitcnt vmcnt(0)")
    A.I(f"v_and_b32 v{CA}, v{CA}, v{CA+1}"); A.I(f"v_and_b32 v{CA+2}, v{CA+2}, v{CA+3}"); A.I(f"v_and_b32 v{CA}, v{CA}, v{CA+2}")
    A.I(f"v_cmp_ne_u32 vcc, 1, v{CA}")
    A.I(f"s_add_u32 s{S_SPIN}, s{S_SPIN}, 1"); A.I(f"s_cmp_gt_u32 s{S_SPIN}, 0x80000"); A.I("s_cbranch_scc1 L_abort")
    A.nop(2)
    A.I(f"s_cbranch_vccz {lab2}")
    A.I(f"buffer_load_dwordx4 v[{CA}:{CA+3}], v2, {WSR}, s{sO} offen sc0 sc1")
    A.I(f"s_branch {lab}")
    A.L(lab2)
    A.I("s_barrier")
    stamp(A, "a_it7")
    lab = A.label("nores")
    A.I(f"s_cmp_lg_u32 s{S_L}, 0"); A.I(f"s_cbranch_scc1 {lab}")
    coords_tc(A, sT, sO)
    A.I(f"s_lshl_b32 s{sT}, s{sT}, 1"); A.I(f"s_and_b32 s{sM}, s{S_W}, 1"); A.I(f"s_add_u32 s{sT}, s{sT}, s{sM}"); A.I(f"s_lshl_b32 s{sT}, s{sT}, 15")
    A.I(f"s_lshl_b32 s{sO}, s{sO}, 1"); A.I(f"s_lshr_b32 s{sM}, s{S_W}, 1"); A.I(f"s_add_u32 s{sO}, s{sO}, s{sM}"); A.I(f"s_lshl_b32 s{sO}, s{sO}, 6")
    A.I(f"s_add_u32 s{sT}, s{sT}, s{sO}")
    for i in range(4): A.I(f"buffer_load_dwordx2 v[{V_RES+2*i}:{V_RES+1+2*i}], v{V_ROW}, {SR(R_AX)}, s{sT} offen offset:{16*i}")
    A.I(f"s_lshl_b32 s{sIt}, s{S_R}, 3"); A.I(f"s_add_u32 s{sIt}, s{sIt}, s{S_X}"); A.I(f"s_lshl_b32 s{sIt}, s{sIt}, 2"); A.I(f"s_add_u32 s{sIt}, s{sIt}, s{S_W}")
    A.I(f"s_mul_i32 s{sM}, s{sIt}, 1376"); A.I(f"s_mul_i32 s{sIt}, s{sIt}, 1536")
    A.I("s_mov_b64 exec, 0xfff"); A.I(f"buffer_load_dword a4, v{V_LN}, {SR(R_D)}, s{sM} offen")
    A.I(f"buffer_load_dword a7, v{V_LN}, {WSR}, s{sIt} offen sc1")
    A.I("s_mov_b64 exec, -1")
    A.L(lab)
    park_loads(A, 0, 5, sM)
    A.I(f"s_lshl_b32 s{sWa}, s{sWa}, 1"); A.I(f"s_add_u32 s{sWa}, s{sWa}, {WFG:#x}")
    A.I(f"v_add_u32 v{CA+3}, s{sWa}, v{V_LN}"); A.I(f"v_add_u32 v{CA}, 8192, v{CA+3}"); A.I(f"v_add_u32 v{CA+1}, 14336, v{CA+3}")
    A.I(f"s_lshl_b32 s{sO}, s{S_R}, 14"); A.I(f"s_lshl_b32 s{sM}, s{S_W}, 12"); A.I(f"s_add_u32 s{sO}, s{sO}, s{sM}")
    def wo_t():
        A.I("s_mov_b32 exec_hi, 0"); A.I(f"buffer_load_dword a5, v{V_LN}, {SR(R_WO)}, s{sO} offen"); A.I("s_mov_b32 exec_hi, -1")
    body(feed([wo_t, lambda: None, lambda: pretouch(A, CA+3, 6, False)]), None, slots=(1,))
    stamp(A, "a_it8")
    A.I(f"s_mov_b32 s{sIt}, 8"); A.I(f"v_mov_b32 v{CA+2}, v{V_TA}")
    A.I(".p2align 6")
    A.L(loopb)
    def rot():
        pretouch(A, CA, 6, False); A.I(f"v_mov_b32 v{CA}, v{CA+1}"); A.I(f"v_mov_b32 v{CA+1}, v{CA+2}"); A.I(f"v_mov_b32 v{CA+2}, v{V_TB}")
    body(feed([rot]), 12, slots=(1,))
    A.I(f"s_cbranch_scc1 {loopb}")
    A.I("s_barrier")
    stamp(A, "a_it12")
    Wwo = res_w_feeder(A, 'wo')
    F = Feeder(A)
    for _ in range(16): F.add(lambda: Wwo.emit(1))
    for _ in range(10): F.add(lambda: Wgu.emit(1))
    for it in range(4):
        if it < 2: park_loads(A, 5 + 5*it, 10 + 5*it, sM)
        G = Feeder(A); G.q = F.q[:8]; F.q = F.q[8:]
        body(G, None, slots=(1, 2))
    A.nop(2)
    smf(OB, VBr[(U-1)&1], SB+8)
    stamp(A, "att_loop")
    A.I(f"s_mov_b32 s{sEnd}, {f32bits(2.0**-24):#x}"); A.I(f"s_mov_b32 s{sPh}, {f32bits(2.0**64):#x}")
    A.I(f"s_lshl_b32 s{sT}, s{sQB}, 5"); A.I(f"s_add_u32 s{sT}, s{sT}, s{sH}")
    for i in flag_addr(A, sO, F_ATT, sT): A.I(i)
    A.nop(4)
    fin, slow = pre + "_afin", pre + "_aslow"
    A.I(f"v_cmp_le_f32 s[86:87], s{sEnd}, v{OA+8}"); A.I(f"v_cmp_ge_f32 s[88:89], s{sPh}, v{OA+8}")
    A.I(f"v_cmp_le_f32 s[94:95], s{sEnd}, v{OB+8}"); A.I(f"v_cmp_ge_f32 vcc, s{sPh}, v{OB+8}")
    A.I(f"v_rcp_f32 v{tmp}, v{OA+8}"); A.I(f"v_rcp_f32 v{tmp+1}, v{OB+8}")
    A.I("s_and_b64 s[86:87], s[86:87], s[88:89]"); A.I("s_and_b64 s[94:95], s[94:95], vcc"); A.I("s_and_b64 s[86:87], s[86:87], s[94:95]")
    A.I("s_cmp_eq_u64 s[86:87], exec"); A.I(f"s_cbranch_scc0 {slow}")
    A.L(fin)
    for X, (O, so) in enumerate(((OA, sQO), (OB, sQO+1))):
        for i in range(8): A.I(f"v_mul_f32 v{O+i}, v{O+i}, v{tmp+X}")
        for i in range(4): A.I(f"v_cvt_pk_bf16_f32 v{SA+4*X+i}, v{O+2*i}, v{O+2*i+1}")
        A.VM(f"buffer_store_dwordx4 v[{SA+4*X}:{SA+4*X+3}], v2, {WSR}, s{so} offen{STL()}", "st")
    stamp(A, "att_stored")
    post_wave(A, sO, FLL())
    stamp(A, "att_posted")
    A.I("s_barrier")
    O = Asm()
    O.L(slow)
    mA, mB, sC, sA = tmp, tmp+1, sRot, sM
    O.I(f"v_mov_b32 v{mA}, 0xff800000"); O.I(f"v_mov_b32 v{mB}, 0xff800000")
    O.I(f"s_mov_b32 s{sC}, 0"); O.I(f"s_mov_b32 s{sA}, 0")
    O.L(f"{slow}_mx")
    O.I(f"buffer_load_dwordx4 v[{Kr[0]}:{Kr[0]+3}], v2, s[12:15], s{sA} offen{LD}")
    O.I(f"s_add_u32 s{sA}, s{sA}, 2048"); O.I("s_waitcnt vmcnt(0)")
    mfma(O, v(SA,16), v(Kr[0],4), v(QA,4), "0"); mfma(O, v(SB,16), v(Kr[0],4), v(QB_,4), "0")
    O.nop(16)
    for i in range(8): O.I(f"v_max3_f32 v{mA}, v{SA+2*i}, v{SA+2*i+1}, v{mA}")
    for i in range(8): O.I(f"v_max3_f32 v{mB}, v{SB+2*i}, v{SB+2*i+1}, v{mB}")
    O.I(f"s_add_u32 s{sC}, s{sC}, 1"); O.I(f"s_cmp_lt_u32 s{sC}, 64"); O.I(f"s_cbranch_scc1 {slow}_mx")
    for m, Cc in ((mA, CA), (mB, CB)):
        O.I(f"v_mov_b32 v{tmp+2}, v{m}"); O.nop(2)
        O.I(f"v_permlane32_swap_b32 v{m}, v{tmp+2}"); O.nop(1)
        O.I(f"v_max_f32 v{m}, v{m}, v{tmp+2}")
        for i in range(16): O.I(f"v_sub_f32 v{Cc+i}, 0, v{m}")
    for i in range(32): O.I(f"v_mov_b32 v{OA+i}, 0")
    for i in range(8): O.I(f"v_mov_b32 v{VAr[0]+i}, 0x3f803f80")
    O.I(f"v_and_b32 v{tmp+2}, 0xffff, v{V_VA}")
    O.I(f"s_mov_b32 s{sC}, 0"); O.I(f"s_mov_b32 s{sA}, 0")
    O.L(f"{slow}_pv")
    O.I(f"buffer_load_dwordx4 v[{Kr[0]}:{Kr[0]+3}], v2, s[12:15], s{sA} offen{LD}")
    O.I("s_mov_b32 exec_lo, 0xffff"); O.I("s_mov_b32 exec_hi, 0xffff")
    O.I(f"buffer_load_dwordx4 v[{VAr[0]}:{VAr[0]+3}], v{tmp+2}, s[12:15], s{sA} offen{LD}")
    O.I(f"buffer_load_dwordx4 v[{VBr[0]}:{VBr[0]+3}], v{tmp+2}, s[12:15], s{sA} offen offset:512{LD}")
    O.I("s_mov_b64 exec, -1")
    O.I(f"s_add_u32 s{sA}, s{sA}, 2048"); O.I("s_waitcnt vmcnt(0)")
    mfma(O, v(SA,16), v(Kr[0],4), v(QA,4), v(CA,16)); mfma(O, v(SB,16), v(Kr[0],4), v(QB_,4), v(CB,16))
    O.nop(16)
    for i in range(32): O.I(f"v_exp_f32 v{SA+i}, v{SA+i}")
    O.nop(2)
    for Oo, S in ((OA, SA), (OB, SB)):
        O.I(f"v_smfmac_f32_32x32x32_bf16 v[{Oo}:{Oo+15}], v[{VAr[0]}:{VAr[0]+3}], v[{S}:{S+7}], v{idx}")
        O.I(f"v_smfmac_f32_32x32x32_bf16 v[{Oo}:{Oo+15}], v[{VBr[0]}:{VBr[0]+3}], v[{S+8}:{S+15}], v{idx}")
    O.nop(8)
    O.I(f"s_add_u32 s{sC}, s{sC}, 1"); O.I(f"s_cmp_lt_u32 s{sC}, 64"); O.I(f"s_cbranch_scc1 {slow}_pv")
    O.nop(16)
    O.I(f"v_rcp_f32 v{tmp}, v{OA+8}"); O.I(f"v_rcp_f32 v{tmp+1}, v{OB+8}"); O.nop(1)
    O.I(f"s_branch {fin}")
    return O

class RES:
    pass
def res_regs(kind):
    R = RES()
    if kind == 'wo':
        R.sTp, R.sC, R.sKh, R.sTT, R.sAo, R.sT, R.sCt, R.sR, R.sSt, R.sFl, R.sPl = 70, 71, 72, 73, 74, 75, 76, 77, 78, 79, 83
        R.vB, R.vW, R.acc0, R.acc1, R.vTmp = 4, 12, 36, 52, 68
        R.KH, R.SRC, R.BLK, R.EX = 16, OF, WO_BLK, WO_EX
    else:
        R.sTp, R.sC, R.sKh, R.sTT, R.sAo, R.sT, R.sCt, R.sR, R.sSt, R.sFl, R.sPl = 80, 81, 82, 83, 86, 87, 91, 94, 95, 12, 13
        R.vB, R.vW, R.acc0, R.acc1, R.vTmp = 208, 96, 112, 128, 88
        R.KH, R.SRC, R.BLK, R.EX = 43, HF, DN_BLK, DN_EX
    return R
def res_setup_list(A, kind):
    R = res_regs(kind)
    T = Asm()
    sTp, sC, sKh, sTT, sAo, sT, sCt, sR, sSt, vB, vTmp, acc0 = R.sTp, R.sC, R.sKh, R.sTT, R.sAo, R.sT, R.sCt, R.sR, R.sSt, R.vB, R.vTmp, R.acc0
    coords_tc(T, sTp, sC)
    T.I(f"s_lshr_b32 s{sKh}, s{S_W}, 1")
    T.I(f"s_lshl_b32 s{sTT}, s{sTp}, 1"); T.I(f"s_and_b32 s{sT}, s{S_W}, 1"); T.I(f"s_add_u32 s{sTT}, s{sTT}, s{sT}")
    T.I(f"s_mul_i32 s{sAo}, s{sTT}, {2*R.KH*1024}"); T.I(f"s_mul_i32 s{sT}, s{sKh}, {(16 if kind == 'wo' else 42)*1024}"); T.I(f"s_add_u32 s{sAo}, s{sAo}, s{sT}")
    T.I(f"s_add_u32 s{sAo}, s{sAo}, {R.SRC:#x}")
    T.I(f"s_lshl_b32 s{sCt}, s{sC}, 1"); T.I(f"s_add_u32 s{sCt}, s{sCt}, s{sKh}")
    T.I(f"s_lshl_b32 s{sR}, s{sTT}, 15"); T.I(f"s_lshl_b32 s{sT}, s{sCt}, 11"); T.I(f"s_add_u32 s{sR}, s{sR}, s{sT}"); T.I(f"s_add_u32 s{sR}, s{sR}, {XB:#x}")
    T.I(f"s_lshl_b32 s{sSt}, s{sTT}, 12"); T.I(f"s_add_u32 s{sSt}, s{sSt}, {STX:#x}")
    T.I(f"s_lshl_b32 s{sT}, s{sC}, 9"); T.I(f"s_add_u32 s{sSt}, s{sSt}, s{sT}"); T.I(f"s_lshl_b32 s{sT}, s{sKh}, 3"); T.I(f"s_add_u32 s{sSt}, s{sSt}, s{sT}")
    T.I(f"s_lshl_b32 s{sT}, s{sKh}, 6"); T.I(f"v_xor_b32 v{vB}, s{sT}, v{V_T128}")
    T.I(f"s_lshl_b32 s{sT}, s{sKh}, 11"); T.I(f"v_add_u32 v{vB}, s{sT}, v{vB}"); T.I(f"v_xor_b32 v{vB+1}, 64, v{vB}")
    mk_windows(T, vB, vB, 3, 2); mk_windows(T, vB+1, vB+1, 3, 2)
    T.I(f"s_lshl_b32 s{sT}, s{S_W}, 12"); T.I(f"s_add_u32 s{sT}, s{sT}, {R.EX}")
    T.I(f"v_add_u32 v{vTmp}, s{sT}, v2"); T.I(f"s_xor_b32 s{sT}, s{S_W}, 2"); T.I(f"s_lshl_b32 s{sT}, s{sT}, 12"); T.I(f"s_add_u32 s{sT}, s{sT}, {R.EX}")
    T.I(f"v_add_u32 v{vTmp+1}, s{sT}, v2")
    for i in range(8):
        T.I(f"v_lshlrev_b32 v{acc0+2*i}, 16, v{V_RES+i}"); T.I(f"v_and_b32 v{acc0+2*i+1}, 0xffff0000, v{V_RES+i}")
    T.I(f"s_lshl_b32 s{sT}, s{sTp}, 3"); T.I(f"s_add_u32 s{sT}, s{sT}, s{sC}")
    for i in flag_addr(T, R.sFl, F_WO if kind == 'wo' else F_DN, sT): T.I(i)
    if kind == 'dn':
        T.I(f"s_lshr_b32 s{sT}, s{sTp}, 1"); T.I(f"s_lshl_b32 s{sT}, s{sT}, 4")
        for i in poll_addr(R.sPl, F_GUE, sT): T.I(i)
        T.I(f"s_add_u32 s14, s{R.sPl}, {(F_GU - F_GUE) & M32:#x}"); T.I(f"s_add_u32 s15, s{R.sPl}, {(F_GUE0 - F_GUE) & M32:#x}")
    return [l.strip() for l in T.lines]
def dn_x_feeder(A):
    R = res_regs('dn'); X = Feeder(A)
    for i in range(43):
        def f(i=i):
            u = dn_unit(i)
            if u is None:
                A.I(f"s_mul_i32 s{R.sT}, s{R.sKh}, {41*1024}"); A.I(f"s_sub_u32 s{R.sT}, s{R.sAo}, s{R.sT}"); A.I(f"s_add_u32 s{R.sT}, s{R.sT}, {84*1024}"); o = 0
            else:
                o = u % 2
                if o == 0: A.I(f"s_add_u32 s{R.sT}, s{R.sAo}, {u*1024}")
            A.VM(f"buffer_load_dwordx4 a[{dn_areg(i)}:{dn_areg(i)+3}], v2, {WSR}, s{R.sT} offen offset:{1024*o}{LD}", f"x{i}")
        X.add(f)
    return X
def res_main(A, kind, X, W, sched, pre, after_x=None):
    R = res_regs(kind)
    KH, BLK, vB, vW, acc0, acc1, vTmp, sR, sSt = R.KH, R.BLK, R.vB, R.vW, R.acc0, R.acc1, R.vTmp, R.sR, R.sSt
    def rd(i, q, p):
        k, o = win(BLK[i])
        return [(f"ds_read_b64_tr_b16 v[{p+2*hh}:{p+2*hh+1}], v{vB+2*k+q} offset:{o+1024*hh}", f"k{i}q{q}") for hh in range(2)]
    seq = [(i, q) for i in range(KH) for q in range(2)]
    DEP = 4
    for j in range(DEP-1):
        for r in rd(*seq[j], vW + 4*(j % DEP)): A.LD(*r)
    for j, (i, q) in enumerate(seq):
        if q == 0:
            if kind == 'dn' and i in (12, 28): stamp(A, f"dn_i{i}")
            sched(i, -1, X)
            A.wait_vm(f"x{i}")
            if i == 0: stamp(A, kind + "_x0")
        A.wait_lg(f"k{i}q{q}")
        mfma(A, v((acc0, acc1)[q],16), v(vW + 4*(j % DEP),4), a(dn_areg(i) if kind == 'dn' else 4*i,4), "0" if (i == 0 and q == 1) else None)
        if j + DEP - 1 < len(seq):
            for r in rd(*seq[j+DEP-1], vW + 4*((j+DEP-1) % DEP)): A.LD(*r)
        sched(i, q, X)
    assert not len(W) and not len(X), (len(W), len(X))
    stamp(A, kind + "_loop")
    A.nop(12)
    for q in range(4): A.I(f"ds_write_b128 v{vTmp}, v[{acc1+4*q}:{acc1+4*q+3}] offset:{1024*q}")
    A.I("s_waitcnt lgkmcnt(0)"); A.I("s_barrier")
    for q in range(4): A.I(f"ds_read_b128 v[{acc1+4*q}:{acc1+4*q+3}], v{vTmp+1} offset:{1024*q}")
    if after_x: after_x()
    sm, sq = vTmp+2, vTmp+4
    for q in range(4):
        b = acc0 + 4*q
        A.I(f"s_waitcnt lgkmcnt({3-q})")
        for i in (0, 2): A.I(f"v_pk_add_f32 v[{b+i}:{b+i+1}], v[{b+i}:{b+i+1}], v[{acc1+4*q+i}:{acc1+4*q+i+1}]")
        for i in (0, 1): A.I(f"v_cvt_pk_bf16_f32 v{V_RES+2*q+i}, v{b+2*i}, v{b+2*i+1}")
        if kind == 'dn' and q == 1: A.I(f"s_cmp_eq_u32 s{S_L}, 1"); A.I(f"s_cbranch_scc1 {pre}_final")
        if q & 1: A.VM(f"buffer_store_dwordx4 v[{V_RES+2*q-2}:{V_RES+2*q+1}], v2, {WSR}, s{sR} offen offset:{1024*(q>>1)}{STL()}", "st")
        if q == 0:
            A.I(f"v_pk_add_f32 v[{sm}:{sm+1}], v[{b}:{b+1}], v[{b+2}:{b+3}]")
            A.I(f"v_pk_mul_f32 v[{sq}:{sq+1}], v[{b}:{b+1}], v[{b}:{b+1}]")
            A.I(f"v_pk_fma_f32 v[{sq}:{sq+1}], v[{b+2}:{b+3}], v[{b+2}:{b+3}], v[{sq}:{sq+1}]")
        else:
            for i in (0, 2):
                A.I(f"v_pk_add_f32 v[{sm}:{sm+1}], v[{sm}:{sm+1}], v[{b+i}:{b+i+1}]")
                A.I(f"v_pk_fma_f32 v[{sq}:{sq+1}], v[{b+i}:{b+i+1}], v[{b+i}:{b+i+1}], v[{sq}:{sq+1}]")
    A.I(f"v_add_f32 v{sm}, v{sm}, v{sm+1}"); A.I(f"v_add_f32 v{sm+1}, v{sq}, v{sq+1}")
    A.I(f"v_mov_b32 v{sq}, v{sm}"); A.I(f"v_mov_b32 v{sq+1}, v{sm+1}"); A.nop(1)
    A.I(f"v_permlane32_swap_b32 v{sm}, v{sq}"); A.I(f"v_permlane32_swap_b32 v{sm+1}, v{sq+1}")
    A.I("s_mov_b32 exec_hi, 0")
    A.I(f"v_pk_add_f32 v[{sm}:{sm+1}], v[{sm}:{sm+1}], v[{sq}:{sq+1}]")
    A.VM(f"buffer_store_dwordx2 v[{sm}:{sm+1}], v2, {WSR}, s{sSt} offen{STL()}", "st")
    A.I("s_mov_b32 exec_hi, -1")
    stamp(A, kind + "_stored")

def final_store(A, pre):
    R = res_regs('dn')
    sTT, sCt, sT, sR, acc0, acc1, vTmp = R.sTT, R.sCt, R.sT, R.sR, R.acc0, R.acc1, R.vTmp
    A.L(pre + "_final")
    for q in (2, 3):
        A.I(f"s_waitcnt lgkmcnt({3-q})")
        for i in (0, 2): A.I(f"v_pk_add_f32 v[{acc0+4*q+i}:{acc0+4*q+i+1}], v[{acc0+4*q+i}:{acc0+4*q+i+1}], v[{acc1+4*q+i}:{acc1+4*q+i+1}]")
        for i in (0, 1): A.I(f"v_cvt_pk_bf16_f32 v{V_RES+2*q+i}, v{acc0+4*q+2*i}, v{acc0+4*q+2*i+1}")
    A.I(f"v_lshrrev_b32 v{vTmp+1}, 5, v1"); A.I(f"v_lshl_add_u32 v{vTmp}, v{vTmp+1}, 3, v{V_ROW}")
    A.I(f"s_lshl_b32 s{sT}, s{sTT}, 15"); A.I(f"s_lshl_b32 s{sR}, s{sCt}, 6"); A.I(f"s_add_u32 s{sT}, s{sT}, s{sR}")
    for b in (0, 4):
        A.I(f"v_permlane32_swap_b32 v{V_RES+b}, v{V_RES+b+2}"); A.I(f"v_permlane32_swap_b32 v{V_RES+b+1}, v{V_RES+b+3}")
        A.I(f"buffer_store_dwordx4 v[{V_RES+b}:{V_RES+b+3}], v{vTmp}, {SR(R_OUT)}, s{sT} offen offset:{8*b}")
    if INSTR:
        A.I("s_waitcnt vmcnt(0)")
        stamp(A, "end")
        A.I("s_memrealtime s[98:99]"); A.I("s_waitcnt lgkmcnt(0)")
        A.I("v_writelane_b32 v236, s98, 63"); A.I("v_writelane_b32 v236, s101, 62")
        A.I(f"s_lshl_b32 s98, s{S_R}, 3"); A.I(f"s_add_u32 s98, s98, s{S_X}"); A.I(f"s_lshl_b32 s98, s98, 2"); A.I(f"s_add_u32 s98, s98, s{S_W}"); A.I("s_lshl_b32 s98, s98, 9"); A.I(f"s_add_u32 s98, s98, {DBGO:#x}")
        A.I(f"buffer_store_dword v235, v{V_FL}, {WSR}, s98 offen")
        A.I(f"buffer_store_dword v236, v{V_FL}, {WSR}, s98 offen offset:256")
    A.I("s_endpgm")

def ph_gu(A, W, Wdn):
    sI, sG, sU0, sTT, sXo, sT, sH, sDup, sFe, sFl = 70, 71, 72, 73, 74, 75, 76, 77, 78, 79
    vB, vST, vCS, vMF, vMean, vRstd, vTmp, vW, vO, acc = 4, 12, 28, 52, 56, 57, 58, 64, 80, 112
    RD = res_regs('dn')
    coords_ij(A, sI, sG); gu_u0(A, sU0)
    A.I(f"s_lshl_b32 s{sTT}, s{sI}, 2"); A.I(f"s_add_u32 s{sTT}, s{sTT}, s{S_W}")
    A.I(f"s_lshl_b32 s{sXo}, s{sTT}, 15"); A.I(f"s_add_u32 s{sXo}, s{sXo}, {XB:#x}")
    A.I(f"v_bfe_u32 v{vTmp}, v1, 4, 1"); A.I(f"v_lshl_add_u32 v{vB}, v{vTmp}, 10, v{V_T64}"); A.I(f"v_xor_b32 v{vB+1}, 32, v{vB}")
    mk_windows(A, vB, vB, 3, 2); mk_windows(A, vB+1, vB+1, 3, 2)
    A.I(f"s_lshl_b32 s{sT}, s{sU0}, 10"); A.I(f"s_add_u32 s{sT}, s{sT}, {CSG:#x}")
    for u in range(6):
        if u == 4: A.I(f"s_add_u32 s{sT}, s{sT}, 4096")
        A.VM(f"buffer_load_dwordx4 v[{vCS+4*u}:{vCS+4*u+3}], v2, {WSR}, s{sT} offen offset:{1024*(u%4)}{LD}", "cs")
    A.I(f"s_mul_i32 s{sH}, s{sTT}, 86"); A.I(f"s_add_u32 s{sH}, s{sH}, s{sU0}"); A.I(f"s_lshl_b32 s{sH}, s{sH}, 10")
    A.I(f"s_add_u32 s{sH}, s{sH}, {HF:#x}")
    A.I(f"s_mul_i32 s{sDup}, s{sG}, 6"); A.I(f"s_sub_u32 s{sDup}, s{sDup}, s{sU0}")
    A.I(f"s_lshl_b32 s{sT}, s{sI}, 4"); A.I(f"s_add_u32 s{sT}, s{sT}, s{sG}")
    for i in flag_addr(A, sFl, F_GU, sT): A.I(i)
    A.I(f"s_add_u32 s{sFe}, s{sFl}, {(F_GUE - F_GU) & M32:#x}")
    A.I(f"s_lshl_b32 s{sU0}, s{sTT}, 12"); A.I(f"s_add_u32 s{sU0}, s{sU0}, {STX:#x}")
    pre_groups = W.n // 2
    A.I(f"s_lshl_b32 s{sT}, s{sI}, 4")
    poll(A, F_WO, sT, 16)
    stamp(A, "gu_polled")
    X = x_feeder(A, sXo, 32)
    X.emit(6); stats_load(A, vST, sU0); X.emit(2)
    def rd(n, q, p):
        k, o = win(GU_GRP[n//4] + (n % 4)*2048)
        return [(f"ds_read_b64_tr_b16 v[{p+2*hh}:{p+2*hh+1}], v{vB+2*k+q} offset:{o+512*hh}", f"k{n}q{q}") for hh in range(2)]
    seq = [(n, q) for n in range(96) for q in range(2)]
    DEP = 4
    for j in range(DEP-1):
        for r in rd(*seq[j], vW + 4*(j % DEP)): A.LD(*r)
    V = ilist(A, stats_reduce_list(vST) + stats_fin_list(vST, vMean, vRstd, vMF, vTmp) + ["s_nop 0", f"v_mul_f32 v{vTmp}, v{vRstd}, v{vRstd}"])
    def epi(u):
        b = acc + 16*u; o = vO + 4*(u & 1)
        L = [f"v_mul_f32 v{b+i}, v{b+i}, v{vTmp}" for i in range(8)] + [f"v_mul_f32 v{b+i}, v{b+i}, v{b+8+i}" for i in range(8)]
        L += [f"v_cvt_pk_bf16_f32 v{o+i}, v{b+2*i}, v{b+2*i+1}" for i in range(4)]
        F = ilist(A, L)
        def st():
            A.I(f"s_cmp_gt_u32 s{sDup}, {u}"); A.I(f"s_cselect_b32 s97, 0xf0000000, s{sH}")
            A.VM(f"buffer_store_dwordx4 v[{o}:{o+3}], v2, {WSR}, s97 offen offset:{1024*(u%4)}{STL()}", "st")
            if u == 3: A.I(f"s_add_u32 s{sH}, s{sH}, 4096")
        F.add(st)
        return F.q
    E = Feeder(A)
    D = ilist(A, res_setup_list(A, 'dn'))
    XD = dn_x_feeder(A)
    def wq_touch(k):
        if not P['warm_gu']: return
        if k == 0:
            A.I(f"s_mul_i32 s{sI}, s{S_R}, 49152"); A.I(f"s_mul_i32 s{sG}, s{S_W}, 12288"); A.I(f"s_add_u32 s{sI}, s{sI}, s{sG}")
            A.I(f"s_cmp_eq_u32 s{S_L}, 1"); A.I(f"s_cselect_b32 s{sI}, 0xf0000000, s{sI}")
        A.I("s_mov_b32 exec_hi, 0xffff")
        A.VM(f"buffer_load_dword a{252+k}, v{V_LN}, {WSR}, s{sI} offen sc1", "warm")
        A.I("s_mov_b32 exec_hi, -1"); A.I(f"s_add_u32 s{sI}, s{sI}, 6144")
    visible = pre_groups
    for j, (n, q) in enumerate(seq):
        p_, ks = divmod(n, 32)
        jn = j + DEP - 1
        if q == 0 and n in (32, 64): stamp(A, f"gu_n{n}")
        if q == 0 and n in (32, 64):
            for u in (2*p_-2, 2*p_-1): mfma(A, v(acc+16*u,16), v(vCS+4*u,4), v(vMF,4))
            E.q += epi(2*p_-2) + epi(2*p_-1)
        if q == 0 and n < 32:
            A.wait_vm(f"x{n}")
            if n == 0: stamp(A, "gu_x0")
        A.wait_lg(f"k{n}q{q}")
        mfma(A, v(acc+32*p_+16*q,16), v(vW + 4*(j % DEP),4), a(4*ks,4), "0" if ks == 0 else None)
        if jn < len(seq):
            gn = seq[jn][0] // 4
            if gn >= visible:
                iss = W.n // 2
                tgt = min(iss, 19) if visible < 19 else iss
                assert tgt > gn, (n, gn, iss)
                A.wait_vm(f"wg{tgt-1}"); A.I("s_barrier"); visible = tgt
            for r in rd(*seq[jn], vW + 4*(jn % DEP)): A.LD(*r)
        if q == 1 and n in (33, 65): A.I("s_barrier")
        if n < 32:
            if q == 0: X.emit(1)
            if q == 1 and n == 24: pretouch(A, V_TB, 250)
            if n >= 25 and W.n < 38: W.emit(1)
            if q == 1 and n in (30, 31): wq_touch(n - 30)
            if n >= 8: V.emit(1 if n >= 20 else 2)
        else:
            if P['x_noe'] and ks == 3 and q == 0: E.q = [f for f in E.q if f.__name__ == 'st']
            if ks >= 3: E.emit(2)
            if p_ == 1 and ks >= 15: D.emit(3)
            if q == 1 and n == 48: pretouch(A, V_TC, 251)
            if q == 1 and n == 52:
                assert not len(E)
                A.I(f"s_add_u32 s97, s{sFl}, {(F_GUE0 - F_GU) & M32:#x}")
                post_wave(A, 97, FLL())
            if q == 1 and n == 63: A.VM(poll_load(15, V_PD, 15), "pf")
            if q == 1 and n == 66: poll_check(A, 15, V_PD, 15, lambda: A.wait_vm("pf"))
            if q == 1 and n == P['gue']:
                assert not len(E)
                post_wave(A, sFe, FLL()); A.I("s_barrier")
            if q == 1 and n == 94: A.VM(poll_load(15, V_PD, RD.sPl), "pf")
            if q == 1 and n >= 67 and n % 2 == 1 and XD.n < 14: XD.emit(1)
            if q == 0 and ks >= 2:
                lim = 6 if visible < 19 else (17 if n <= 65 else (24 if visible < 24 else (28 if n <= P['gue'] else 32)))
                if n < 55:
                    if n % 2 == 0 and Wdn.n < lim: Wdn.emit(1)
                    elif len(W): W.emit(1)
                elif n % 3 != 2 and Wdn.n < lim: Wdn.emit(1)
    assert not len(V) and not len(W) and not len(X) and not len(E) and not len(D) and Wdn.n == 32 and XD.n == 14, (len(V), len(W), len(E), len(D), Wdn.n, XD.n)
    for u in (4, 5): mfma(A, v(acc+16*u,16), v(vCS+4*u,4), v(vMF,4))
    stamp(A, "gu_loop")
    A.nop(10)
    E.q += epi(4) + epi(5); E.flush()
    stamp(A, "gu_stored")
    poll_check(A, 15, V_PD, RD.sPl, lambda: A.wait_vm("pf"))
    XD.emit(P['h_x'])
    post_wave(A, sFl, FLL())
    stamp(A, "gu_posted")
    A.I("s_barrier")
    return XD

P = dict(warm0=1, warm_att=1, warm_gu=0, force_g=0, park=0, x_nodn=0, x_noe=0, rfgap=1, gu0=0, t0=2, tlb=0, pret=1, warm_dn=1, q_in_dn=10, g_x=4, g_pre=2, g_post=2, q_x=4, d_x=4, gue=84, h_x=8, late_chk=10)
def layer_code(A, pre):
    A.L(pre + "_layer")
    ph_qkv(A)
    Wgu = gu_w_feeder(A)
    O = ph_attn(A, pre, Wgu)
    Wgu.emit(20 - Wgu.n)
    R = res_regs('wo')
    for i in res_setup_list(A, 'wo'): A.I(i)
    A.I(f"s_lshl_b32 s{R.sT}, s{S_X}, 5")
    poll(A, F_ATT, R.sT, 32)
    stamp(A, "wo_polled")
    X = x_feeder(A, R.sAo, 16); X.emit(12)
    def s_wo(i, q, X):
        if q == 0 and len(X): X.emit(1)
    res_main(A, 'wo', X, Feeder(A), s_wo, pre, lambda: Wgu.emit(P['g_x']))
    Wgu.emit(P['g_pre'])
    post_wave(A, R.sFl, FLL())
    stamp(A, "wo_posted")
    Wgu.emit(P['g_post'])
    Wdn = res_w_feeder(A, 'dn')
    XD = ph_gu(A, Wgu, Wdn)
    R = res_regs('dn')
    Wq = qkv_w_feeder(A, QK_GRP)
    nvis = Wdn.n
    CH = P['late_chk']
    def s_dn(i, q, X):
        if q == -1:
            if i == CH - 3: A.VM(poll_load(15, V_PD, 14), "pf")
            if i == CH: poll_check(A, 15, V_PD, 14, lambda: A.wait_vm("pf"))
            if i == 12: A.I("s_barrier")
            if i == 28: A.wait_vm("wdn42"); A.I("s_barrier")
        if q == 0 and (X.n < 28 or i >= CH): X.emit(1)
        if q == 1 and (Wdn.n < 40 or (i >= 12 and len(Wdn))): Wdn.emit(1)
        elif q == 1 and i >= CH and X.n < i + 14: X.emit(1)
        if i >= 29 and q == 1 and Wq.n < P['q_in_dn']: Wq.emit(1)
    assert nvis - 2 >= 28
    if P['park']:
        Wq.q = Wq.q[:9]
        res_main(A, 'dn', XD, Wdn, s_dn, pre)
        assert not len(Wq)
        post_wave(A, R.sFl, FLL())
        stamp(A, "dn_posted")
        park_writes(A, 4)
    else:
        res_main(A, 'dn', XD, Wdn, s_dn, pre, lambda: Wq.emit(P['q_x']))
        Wq.emit(4)
        post_wave(A, R.sFl, FLL())
        stamp(A, "dn_posted")
        Wq.flush()
    A.I(f"s_add_u32 s{S_LB}, s{S_LB}, {LSTR:#x}"); A.I(f"s_add_u32 s{S_L}, s{S_L}, 1")
    if INSTR: A.I("v_mov_b32 v235, v236")
    A.I(f"s_branch {pre}_layer")
    final_store(A, pre)
    A.lines += O.lines

def build():
    A = Asm()
    setup(A)
    if INSTR:
        A.I("s_memrealtime s[100:101]"); A.I("s_waitcnt lgkmcnt(0)"); A.I("s_mov_b32 s101, s100"); A.I("v_mov_b32 v236, 0")
    stamp(A, "start")
    ph_qkv0(A)
    A.L("L_end"); A.L("L_abort"); A.I("s_endpgm")
    Mode.local = True; layer_code(A, "L")
    Mode.local = False; layer_code(A, "G")
    return A.text()

def main(out):
    body = build()
    name = NAME + "_kernel"
    hdr = open("cdna_kernels/" + NAME + ".s.ref").read().split("; Override launch")[0]
    txt = hdr + "; @launch grid=(256,1,1) block=(256,1,1) lds=163840\n" + '.amdgcn_target "amdgcn-amd-amdhsa--gfx950"\n'
    txt += f".text\n.globl {name}\n.p2align 8\n.type {name},@function\n{name}:\n" + body
    txt += f""".section .rodata,"a"
.p2align 6
.amdhsa_kernel {name}
  .amdhsa_next_free_vgpr 512
  .amdhsa_next_free_sgpr 102
  .amdhsa_accum_offset 256
  .amdhsa_group_segment_fixed_size 0
  .amdhsa_kernarg_size 80
  .amdhsa_user_sgpr_count 2
  .amdhsa_user_sgpr_kernarg_segment_ptr 1
  .amdhsa_system_sgpr_workgroup_id_x 1
.end_amdhsa_kernel
"""
    open(out, "w").write(txt)
    if INSTR: open(out + ".stamps", "w").write("\n".join(STN))

if __name__ == "__main__":
    INSTR = int(sys.argv[2]) if len(sys.argv) > 2 else 0
    for kv in sys.argv[3:]:
        k, val = kv.split("="); P[k] = int(val)
    main(sys.argv[1])
```
